```python
import torch

def _softmax(x, axis=-1):
    return torch.softmax(x, dim=axis)

def _gelu(x):
    return torch.nn.functional.gelu(x, approximate='tanh')

def _silu(x):
    return torch.nn.functional.silu(x)

def _sigmoid(x):
    return torch.sigmoid(x)

def _layernorm(x, axis=-1, eps=1e-05):
    m = x.mean(dim=axis, keepdim=True)
    v = x.var(dim=axis, keepdim=True, unbiased=False)
    return (x - m) / torch.sqrt(v + eps)

def _scatter_add(tgt, idx, src, axis=0):
    return tgt.clone().index_add_(axis, idx, src)

def _segment_sum(src, seg, n):
    out = torch.zeros((n,) + src.shape[1:], dtype=src.dtype)
    return out.index_add_(0, seg, src)

def _pad(x, pw):
    flat = tuple((v for pair in reversed(pw) for v in pair))
    return torch.nn.functional.pad(x, flat)
kernel_name = 'sequential_preLN__memory_aug_recurrent_mem_tr__glu_gated_swiglu__prompt'

def setup_inputs():

    _w = lambda a: (lambda t: t.to(torch.bfloat16) if t.is_floating_point() else t)(torch.as_tensor(a))

    def _A_setup():
        B, S, Dm = (1, 2048, 512)
        H, Dh = (32, 128)
        M, seg = (8, 32)
        seg = min(seg, S)
        S = S // seg * seg
        return {'x': _w((lambda *s: torch.randn(*s, dtype=torch.bfloat16) * 0.05)(B, S, Dm)), 'mem0': _w((lambda *s: torch.randn(*s, dtype=torch.bfloat16) * 0.2)(B, M, Dm)), 'Wq': _w((lambda *s: torch.randn(*s, dtype=torch.bfloat16) * 1.6)(Dm, H, Dh) * Dm ** (-0.5)), 'Wk': _w((lambda *s: torch.randn(*s, dtype=torch.bfloat16) * 1.6)(Dm, H, Dh) * Dm ** (-0.5)), 'Wv': _w((lambda *s: torch.randn(*s, dtype=torch.bfloat16) * 0.2)(Dm, H, Dh) * Dm ** (-0.5)), 'Wo': _w((lambda *s: torch.randn(*s, dtype=torch.bfloat16) * 0.2)(H, Dh, Dm) * (H * Dh) ** (-0.5)), 'seg_len': seg}
    _A_in = _A_setup()

    def _B_setup():
        B, S, D, F = (1, 2048, 512, 1792)
        return {'x': _w((lambda *s: torch.randn(*s, dtype=torch.bfloat16) * 0.05)(B, S, D)), 'w1': _w((lambda *s: torch.randn(*s, dtype=torch.bfloat16) * 0.2)(D, F) * (2.0 / D) ** 0.5), 'w3': _w((lambda *s: torch.randn(*s, dtype=torch.bfloat16) * 0.2)(D, F) * (2.0 / D) ** 0.5), 'w2': _w((lambda *s: torch.randn(*s, dtype=torch.bfloat16) * 0.2)(F, D) * (2.0 / F) ** 0.5)}
    _B_in = _B_setup()
    return {'A_x': _A_in['x'], 'A_mem0': _A_in['mem0'], 'A_Wq': _A_in['Wq'], 'A_Wk': _A_in['Wk'], 'A_Wv': _A_in['Wv'], 'A_Wo': _A_in['Wo'], 'A_seg_len': _A_in['seg_len'], 'B_x': _B_in['x'], 'B_w1': _B_in['w1'], 'B_w3': _B_in['w3'], 'B_w2': _B_in['w2']}

def reference(A_x, A_mem0, A_Wq, A_Wk, A_Wv, A_Wo, A_seg_len, B_x, B_w1, B_w3, B_w2):

    def _A_ref(x, mem0, Wq, Wk, Wv, Wo, seg_len):
        B, S, Dm = x.shape
        H, Dh = (Wq.shape[1], Wq.shape[2])
        M = mem0.shape[1]
        scale = Dh ** (-0.5)
        n_seg = S // seg_len
        L = M + seg_len
        idx = torch.arange(L)
        mask = (idx[:, None] < M) | (idx[:, None] >= idx[None, :])
        mem = mem0
        outs = []
        for s in range(n_seg):
            xs = x[:, s * seg_len:(s + 1) * seg_len, :].clone()
            h = torch.concatenate([mem, xs], axis=1)
            q = torch.einsum('btd,dhe->bhte', h, Wq)
            k = torch.einsum('btd,dhe->bhte', h, Wk)
            v = torch.einsum('btd,dhe->bhte', h, Wv)
            scores = torch.einsum('bhqe,bhke->bhqk', q, k) * scale
            scores = torch.where(mask[None, None], scores, -1000000000.0)
            p = _softmax(scores, axis=-1)
            o = torch.einsum('bhqk,bhke->bhqe', p, v)
            o = torch.einsum('bhte,hed->btd', o, Wo)
            mem = o[:, :M, :].clone()
            outs.append(o[:, M:, :])
        return torch.concatenate(outs, axis=1)

    def _B_ref(x, w1, w3, w2):
        gate = torch.einsum('bsd,df->bsf', x, w1)
        up = torch.einsum('bsd,df->bsf', x, w3)
        h = _silu(gate) * up
        out = torch.einsum('bsf,fd->bsd', h, w2)
        return out
    x = A_x
    h = x + _A_ref(_layernorm(x, axis=-1), A_mem0, A_Wq, A_Wk, A_Wv, A_Wo, A_seg_len)
    h2 = h + _B_ref(_layernorm(h, axis=-1), B_w1, B_w3, B_w2)
    return h2
```

```python
import re

REG_RE = re.compile(r'(?<![\w.])([vas])(?:(\d+)|\[(\d+):(\d+)\])(?![\w])')
TRANS = ('v_exp_f32', 'v_log_f32', 'v_rcp_f32', 'v_rsq_f32', 'v_sqrt_f32', 'v_sin_f32', 'v_cos_f32')


def regs_of(txt):
    out = []
    for m in REG_RE.finditer(txt):
        k = m.group(1)
        if m.group(2) is not None:
            out.append((k, int(m.group(2))))
        else:
            out += [(k, i) for i in range(int(m.group(3)), int(m.group(4)) + 1)]
    for sp in ('vcc', 'exec', 'm0'):
        if re.search(r'(?<![\w])' + sp + r'(?![\w])', txt):
            out.append((sp, 0))
    return out


def split_ops(s):
    ops, depth, cur = [], 0, ''
    for ch in s:
        if ch in '[(':
            depth += 1
        if ch in '])':
            depth -= 1
        if ch == ',' and depth == 0:
            ops.append(cur.strip())
            cur = ''
        else:
            cur += ch
    if cur.strip():
        ops.append(cur.strip())
    return ops


class I:
    __slots__ = ('txt', 'op', 'defs', 'uses', 'kind', 'tag', 'passes', 'srcC', 'srcAB', 'wide', 'dpp', 'target', 'states', 'early')

    def __init__(self, txt, tag=None):
        self.txt = txt
        self.tag = tag
        t = txt.split(';')[0].strip()
        sp = t.split(None, 1)
        self.op = op = sp[0]
        rest = sp[1] if len(sp) > 1 else ''
        ops = split_ops(rest)
        R = [regs_of(o) for o in ops]
        allr = [r for x in R for r in x]
        self.defs, self.uses = [], []
        self.passes = 0
        self.srcC, self.srcAB = [], []
        self.wide = False
        self.dpp = ('_dpp' in op) or ('quad_perm' in rest) or ('row_' in rest and 'row_mask' in rest)
        self.target = None
        self.states = 1
        if op.startswith('v_mfma') or op.startswith('v_smfmac'):
            self.kind = 'mfma'
            self.passes = 8 if '32x32' in op else 4
            self.defs = R[0]
            if op.startswith('v_smfmac'):
                self.srcC = R[0]
                self.srcAB = R[1] + R[2] + R[3]
            else:
                self.srcC = R[3] if len(R) > 3 else []
                self.srcAB = R[1] + R[2]
            self.uses = self.srcC + self.srcAB
        elif op.startswith('v_'):
            self.kind = 'valu'
            if 'permlane' in op and 'swap' in op:
                self.defs = R[0] + R[1]
                self.uses = R[0] + R[1]
            elif op.startswith(('v_fmac', 'v_dot2c', 'v_writelane')):
                self.defs = R[0]
                self.uses = allr
            elif op.startswith('v_nop'):
                pass
            else:
                self.defs = R[0]
                self.uses = [r for x in R[1:] for r in x]
                if self.dpp and 'bound_ctrl' not in rest:
                    self.uses = self.uses + R[0]
        elif op.startswith('ds_'):
            self.kind = 'ds'
            if op.startswith(('ds_read', 'ds_bpermute', 'ds_permute', 'ds_swizzle')):
                self.defs = R[0]
                self.uses = [r for x in R[1:] for r in x]
            else:
                self.uses = allr
        elif op.startswith(('buffer_', 'global_')):
            self.kind = 'vmem'
            words = rest.replace(',', ' ').split()
            if op in ('buffer_inv', 'buffer_wbl2'):
                pass
            elif '_load' in op and ('lds' in words or '_lds_' in op):
                self.uses = allr + [('m0', 0)]
            elif '_load' in op:
                self.defs = R[0]
                self.uses = [r for x in R[1:] for r in x]
            elif '_atomic' in op:
                self.uses = allr
                if 'sc0' in words:
                    self.defs = R[0]
            else:
                self.uses = allr
                self.wide = op.endswith(('x3', 'x4'))
        elif op.startswith('s_'):
            self.kind = 'salu'
            if op.startswith(('s_load', 's_memtime', 's_memrealtime', 's_buffer_load')):
                self.kind = 'smem'
                self.defs = R[0]
                self.uses = [r for x in R[1:] for r in x]
            elif op.startswith(('s_cbranch', 's_branch')):
                self.kind = 'branch'
                self.target = rest.strip()
                if 'vcc' in op:
                    self.uses = [('vcc', 0)]
                if 'exec' in op:
                    self.uses = [('exec', 0)]
            elif op == 's_nop':
                self.states = int(rest.strip(), 0) + 1
            elif op.startswith(('s_cmp', 's_bitcmp', 's_waitcnt', 's_barrier', 's_setprio', 's_sleep', 's_endpgm')):
                self.uses = allr
            elif 'saveexec' in op:
                self.defs = R[0] + [('exec', 0)]
                self.uses = [r for x in R[1:] for r in x] + [('exec', 0)]
            elif op.startswith(('s_addk', 's_mulk', 's_bitset', 's_cmov')):
                self.defs = R[0]
                self.uses = allr
            else:
                self.defs = R[0] if R else []
                self.uses = [r for x in R[1:] for r in x]
        else:
            raise ValueError('unknown instruction ' + txt)


class Label:
    def __init__(self, name, keep=False):
        self.name = name
        self.keep = keep


class Raw:
    def __init__(self, txt):
        self.txt = txt


class Wait:
    def __init__(self, cls, tag=None):
        self.cls = cls
        self.tag = tag


class Assume:
    def __init__(self, lgkm=True, vm=True):
        self.lgkm = lgkm
        self.vm = vm


def need_states(p, c):
    n = 0
    pd = set(p.defs)
    vd = {r for r in pd if r[0] in 'va'}
    sd = pd - vd
    cu, cd = set(c.uses), set(c.defs)
    if p.kind == 'valu':
        if c.kind == 'mfma' and vd & cu:
            n = max(n, 2)
        if c.kind == 'valu':
            if p.op.startswith(TRANS) and not c.op.startswith(TRANS) and vd & cu:
                n = max(n, 1)
            if (c.dpp or 'permlane' in c.op) and vd & cu:
                n = max(n, 2)
            if c.op.startswith(('v_readlane', 'v_readfirstlane')) and vd & cu:
                n = max(n, 1)
            if sd & cu:
                n = max(n, 4 if c.op.startswith(('v_readlane', 'v_writelane')) else 2)
        if c.kind == 'vmem' and sd & cu:
            n = max(n, 5)
        if c.kind in ('salu', 'smem') and sd & cu and (sd & cu) != {('vcc', 0)}:
            n = max(n, 1)
    elif p.kind == 'mfma':
        big = 12 if p.passes == 8 else 8
        if c.kind == 'mfma':
            if vd & set(c.srcAB):
                n = max(n, big)
            if vd & set(c.srcC):
                if not (list(p.defs) == list(c.srcC) and p.op == c.op):
                    n = max(n, 10 if p.passes == 8 else 6)
        elif c.kind in ('valu', 'ds', 'vmem'):
            if vd & (cu | cd):
                n = max(n, big)
            if c.kind == 'valu' and set(p.srcC) & cd:
                n = max(n, 7 if p.passes == 8 else 3)
    elif p.kind == 'vmem' and p.wide:
        data = {r for r in p.uses if r[0] in 'va'}
        if data & cd and c.kind in ('valu', 'mfma'):
            n = max(n, 2)
        elif data & cd:
            n = max(n, 1)
    elif p.kind == 'salu':
        if ('m0', 0) in pd and ('m0', 0) in cu and c.kind in ('vmem', 'ds'):
            n = max(n, 1)
    return n


class Prog:
    def __init__(self):
        self.items = []

    def __call__(self, txt, tag=None):
        for line in txt.split('\n'):
            line = line.strip()
            if not line or line.startswith(';'):
                continue
            if line.endswith(':'):
                self.items.append(Label(line[:-1]))
            else:
                self.items.append(I(line, tag))
        return self

    def label(self, name, keep=False):
        self.items.append(Label(name, keep))

    def raw(self, txt):
        self.items.append(Raw(txt))

    def wait(self, cls, tag=None):
        self.items.append(Wait(cls, tag))

    def assume(self, lgkm=True, vm=True):
        self.items.append(Assume(lgkm, vm))

    def extend(self, items):
        self.items.extend(items)

    def pass_waitcnt(self):
        out = []
        lg, vm = [], []

        def emit_wait(nl, nv):
            parts = []
            if nv is not None:
                parts.append('vmcnt(%d)' % nv)
            if nl is not None:
                parts.append('lgkmcnt(%d)' % nl)
            if parts:
                out.append(I('s_waitcnt ' + ' '.join(parts)))

        def need(queue, pred):
            idx = -1
            for i, o in enumerate(queue):
                if pred(o):
                    idx = i
            return idx

        for it in self.items:
            if isinstance(it, Label):
                if not it.keep:
                    assert not [o for o in lg if o.defs], 'LDS/SMEM loads outstanding at label %s: %s' % (it.name, [o.txt for o in lg])
                    assert not [o for o in vm if o.defs], 'VMEM loads outstanding at label %s: %s' % (it.name, [o.txt for o in vm])
                out.append(it)
                continue
            if isinstance(it, Raw):
                out.append(it)
                continue
            if isinstance(it, Assume):
                if it.lgkm:
                    lg = []
                if it.vm:
                    vm = []
                continue
            if isinstance(it, Wait):
                q = lg if it.cls == 'lgkm' else vm
                idx = len(q) - 1 if it.tag is None else need(q, lambda o: o.tag == it.tag)
                if it.tag is None:
                    emit_wait(0 if it.cls == 'lgkm' else None, 0 if it.cls == 'vm' else None)
                    del q[:]
                elif idx >= 0:
                    n = len(q) - 1 - idx
                    if it.cls == 'lgkm':
                        if any(o.kind == 'smem' for o in q):
                            n = 0
                        n = min(n, 15)
                        emit_wait(n, None)
                    else:
                        n = min(n, 63)
                        emit_wait(None, n)
                    del q[:len(q) - n]
                continue
            ins = it
            if ins.op == 's_waitcnt':
                m = re.search(r'vmcnt\((\d+)\)', ins.txt)
                if m:
                    n = int(m.group(1))
                    del vm[:max(0, len(vm) - n)]
                m = re.search(r'lgkmcnt\((\d+)\)', ins.txt)
                if m:
                    n = int(m.group(1))
                    if n == 0 or not any(o.kind == 'smem' for o in lg):
                        del lg[:max(0, len(lg) - n)]
                out.append(ins)
                continue
            touched = set(ins.uses) | set(ins.defs)
            nl = nv = None
            if ins.kind == 'ds':
                tl = set(ins.uses)
            else:
                tl = touched
            if ins.kind == 'vmem':
                tv = set(ins.uses) - (set(ins.defs) if '_d16' in ins.op else set())
            else:
                tv = touched
            i = need(lg, lambda o: set(o.defs) & (touched if o.kind == 'smem' else tl))
            if i >= 0:
                nl = len(lg) - 1 - i
                if any(o.kind == 'smem' for o in lg):
                    nl = 0
                nl = min(nl, 15)
                del lg[:len(lg) - nl]
            i = need(vm, lambda o: set(o.defs) & tv)
            if i >= 0:
                nv = min(len(vm) - 1 - i, 63)
                del vm[:len(vm) - nv]
            emit_wait(nl, nv)
            out.append(ins)
            if ins.kind in ('ds', 'smem'):
                lg.append(ins)
            elif ins.kind == 'vmem':
                vm.append(ins)
                assert len([o for o in vm]) <= 200
            if ins.op == 's_endpgm' or ins.op == 's_branch':
                lg, vm = [], []
        self.items = out

    def pass_hazards(self):
        WIN = 14

        def deficit(prev, c):
            d, dist = 0, 0
            for p in reversed(prev):
                n = need_states(p, c)
                if n > dist:
                    d = max(d, n - dist)
                dist += p.states
                if dist >= WIN:
                    break
            return d

        def nops(n):
            r = []
            while n > 0:
                k = min(n, 16)
                r.append(I('s_nop %d' % (k - 1)))
                n -= k
            return r

        out, prev = [], []
        for it in self.items:
            if isinstance(it, I):
                d = deficit(prev, it)
                if d:
                    for x in nops(d):
                        out.append(x)
                        prev.append(x)
                out.append(it)
                prev.append(it)
                if it.op in ('s_branch', 's_endpgm'):
                    prev = []
            else:
                out.append(it)
        self.items = out
        changed = True
        while changed:
            changed = False
            pos = {it.name: i for i, it in enumerate(self.items) if isinstance(it, Label)}
            for i, it in enumerate(self.items):
                if isinstance(it, I) and it.kind == 'branch':
                    prev = []
                    j = i
                    while j >= 0 and len(prev) < WIN:
                        x = self.items[j]
                        if isinstance(x, I):
                            if x is not it and x.op in ('s_branch', 's_endpgm'):
                                break
                            prev.insert(0, x)
                        j -= 1
                    j = pos[it.target] + 1
                    dist, seq = 0, list(prev)
                    while j < len(self.items) and dist < WIN:
                        x = self.items[j]
                        if isinstance(x, I):
                            d = deficit(seq, x)
                            if d:
                                self.items[j:j] = nops(d)
                                changed = True
                                break
                            seq.append(x)
                            dist += x.states
                            if x.op in ('s_branch', 's_endpgm'):
                                break
                        j += 1
                    if changed:
                        break

    def text(self):
        self.pass_waitcnt()
        self.pass_hazards()
        lines = []
        for it in self.items:
            if isinstance(it, Label):
                lines.append(it.name + ':')
            elif isinstance(it, Raw):
                lines.append(it.txt)
            else:
                lines.append('  ' + it.txt)
        return '\n'.join(lines) + '\n'


def R(k, n, cnt=1):
    return '%s%d' % (k, n) if cnt == 1 else '%s[%d:%d]' % (k, n, n + cnt - 1)


class Reg:
    def __init__(self, k, n, cnt):
        self.k, self.n, self.cnt = k, n, cnt

    def __getitem__(self, i):
        if isinstance(i, slice):
            a = i.start or 0
            b = self.cnt if i.stop is None else i.stop
            assert 0 <= a < b <= self.cnt, (a, b, self.cnt)
            return Reg(self.k, self.n + a, b - a)
        assert 0 <= i < self.cnt
        return Reg(self.k, self.n + i, 1)

    def __str__(self):
        return R(self.k, self.n, self.cnt)

    def __format__(self, spec):
        return str(self)


def merge(main, fill, start=0, every=1, per=1):
    out, fill = [], list(fill)
    for i, m in enumerate(main):
        out.append(m)
        if i >= start and (i - start) % every == 0:
            for _ in range(per):
                if fill:
                    out.append(fill.pop(0))
    out += fill
    return out
```

```python
from asmgen import *
from layout import *
import struct

def fbits(x):
    return struct.unpack('<I', struct.pack('<f', x))[0]

V = lambda n, c=1: Reg('v', n, c)
A = lambda n, c=1: Reg('a', n, c)
lane16, a_qx, a_memw = V(0), V(1), V(2)
a_memr = [None, V(3), V(4), V(5)]
a_w, a_qw, a_qr, a_ow = V(6), V(7), V(8), V(9)
g_pst, g_pld, g_pub, andm = V(10), V(11), V(12), V(13)
vb0, idx, vb1, z0, dm, z1 = V(14), V(15), V(16), V(17), V(18), V(19)
ones = V(20, 4)
VX = [V(24, 8), V(32, 8)]
mem = V(40, 32)
qacc, kacc, vacc = V(72, 8), V(80, 8), V(88, 8)
F = [V(96, 8), V(104, 8), V(112, 8), V(120, 8)]
sWS = 's[4:7]'; sW = 's[8:11]'
sH, sWv, sS, sRDY = 's12', 's13', 's14', 's15'
sKV, sEX, sT, sT2 = 's16', 's17', 's18', 's19'
sHF = 's[20:21]'
sC2, sLIM, sCNT = 's22', 's23', 's24'
sP = ['s26', 's27']
sMw = ['s28', 's29']
sM = ['s30', 's31']
sXF, sKF, sM0 = 's32', 's33', ['s34', 's35']
sSEL = 's36'
sVV = 's37'
sEV = 's38'
L_KX, L_MEM, L_QB, L_SEL, L_W = 0, 16384, 24576, 28928, 32768
QOFF = L_QB - L_MEM

LDS_TILES = [('q', 0, 0), ('q', 0, 1), ('q', 1, 0), ('q', 1, 1), ('q', 6, 0), ('q', 6, 1), ('q', 7, 0), ('q', 7, 1)] + \
            [('o', s, t) for t in range(4) for s in range(2)]
ALL_TILES = [(m, b, t) for m in 'qkv' for b in range(8) for t in range(2)] + [('o', s, t) for s in range(2) for t in range(8)]
WREG = {}
_n = 0
for _t in ALL_TILES:
    if _t in LDS_TILES:
        continue
    WREG[_t] = A(8 * _n, 8) if _n < 32 else V(128 + 8 * (_n - 32), 8)
    _n += 1
assert _n == 48
LSLOT = {t: i for i, t in enumerate(LDS_TILES)}


def smf(acc, a, b):
    return f'v_smfmac_f32_16x16x64_bf16 {acc}, {a}, {b}, {idx}'


def ld_tile(t, dst):
    o = LSLOT[t] * 2048
    return [f'ds_read_b128 {dst[0:4]}, {a_w} offset:{o}', f'ds_read_b128 {dst[4:8]}, {a_w} offset:{o + 1024}']


def zero(r):
    return [f'v_mov_b64 {r[i:i + 2]}, 0' for i in range(0, r.cnt, 2)]


def setup(P):
    t0, t1, t2, l, c, g = V(40), V(41), V(42), V(43), V(44), V(45)
    P(f'''
    v_lshrrev_b32 {t0}, 6, v0
    v_and_b32 {l}, 63, v0
    v_readfirstlane_b32 {sWv}, {t0}
    v_and_b32 {c}, 15, {l}
    v_lshrrev_b32 {g}, 4, {l}
    v_lshlrev_b32 {lane16}, 4, {l}
    s_mov_b32 s20, 0x33333333
    s_mov_b32 s21, 0x33333333
    s_mov_b64 vcc, {sHF}
    v_mov_b32 {t0}, 0xeeeeeeee
    v_mov_b32 {t1}, 0x44444444
    v_cndmask_b32 {idx}, {t0}, {t1}, vcc
    v_mov_b32 {t0}, 0xffff0000
    v_mov_b32 {t1}, 0x0000ffff
    v_cndmask_b32 {andm}, {t0}, {t1}, vcc
    v_mov_b32 {z0}, 0
    v_mov_b32 {z1}, 0
    v_mov_b32 {ones[0]}, 0x3f803f80
    v_mov_b32 {ones[1]}, 0x3f803f80
    v_mov_b32 {ones[2]}, 0x3f803f80
    v_mov_b32 {ones[3]}, 0x3f803f80
    s_mov_b32 {sC2}, {fbits(C2)}
    s_mov_b32 {sLIM}, {fbits(40.0)}
    s_lshl_b32 {sT}, {sWv}, 11
    s_add_u32 {sT2}, {sT}, {L_MEM}
    v_add_u32 {a_memw}, {sT2}, {lane16}
    ''')
    for j in (1, 2, 3):
        P(f'''
        s_xor_b32 {sT2}, {sT}, {2048 * j}
        s_add_u32 {sT2}, {sT2}, {L_MEM}
        v_add_u32 {a_memr[j]}, {sT2}, {lane16}''')
    P(f'''
    s_lshl_b32 {sT2}, {sWv}, 15
    s_add_u32 {sT2}, {sT2}, {L_W}
    v_add_u32 {a_w}, {sT2}, {lane16}
    v_mul_u32_u24 {t0}, 1088, {g}
    v_and_b32 {t1}, 9, {c}
    v_lshlrev_b32 {t1}, 4, {t1}
    v_add_u32 {a_qw}, {t0}, {t1}
    v_and_b32 {t1}, 2, {c}
    v_lshlrev_b32 {t1}, 5, {t1}
    v_add_u32 {a_qw}, {a_qw}, {t1}
    v_and_b32 {t1}, 4, {c}
    v_lshlrev_b32 {t1}, 3, {t1}
    v_add_u32 {a_qw}, {a_qw}, {t1}
    s_lshl_b32 {sT2}, {sWv}, 8
    s_add_u32 {sT2}, {sT2}, {L_MEM}
    v_add_u32 {a_qw}, {sT2}, {a_qw}
    v_and_b32 {t1}, 3, {c}
    v_lshlrev_b32 {t1}, 3, {t1}
    v_add_u32 {a_ow}, {t0}, {t1}
    v_and_b32 {t1}, 4, {c}
    v_lshlrev_b32 {t1}, 4, {t1}
    v_add_u32 {a_ow}, {a_ow}, {t1}
    v_and_b32 {t1}, 8, {c}
    v_lshlrev_b32 {t1}, 2, {t1}
    v_add_u32 {a_ow}, {a_ow}, {t1}
    s_lshl_b32 {sT2}, {sWv}, 7
    s_add_u32 {sT2}, {sT2}, {L_MEM}
    v_add_u32 {a_ow}, {sT2}, {a_ow}
    v_and_b32 {t0}, 3, {l}
    v_mul_u32_u24 {t0}, 1088, {t0}
    v_bfe_u32 {t1}, {l}, 2, 2
    v_lshlrev_b32 {t1}, 3, {t1}
    v_add_u32 {t0}, {t0}, {t1}
    v_and_b32 {t1}, 16, {l}
    v_lshlrev_b32 {t1}, 1, {t1}
    v_add_u32 {t0}, {t0}, {t1}
    v_and_b32 {t1}, 32, {l}
    v_lshlrev_b32 {t1}, 2, {t1}
    v_add_u32 {t0}, {t0}, {t1}
    v_add_u32 {a_qr}, {L_MEM}, {t0}
    s_lshl_b32 {sT2}, {sWv}, 8
    v_add_u32 {a_qx}, {sT2}, {a_qr}
    ; g_pst = (8*(4w + c/4) + 2g)*2048 + h*64 + (c%4)*16
    v_lshrrev_b32 {t0}, 2, {c}
    v_lshlrev_b32 {t0}, 14, {t0}
    v_lshlrev_b32 {t1}, 12, {g}
    v_add_u32 {t0}, {t0}, {t1}
    v_and_b32 {t1}, 3, {c}
    v_lshlrev_b32 {t1}, 4, {t1}
    v_add_u32 {t0}, {t0}, {t1}
    s_lshl_b32 {sT}, {sWv}, 16
    s_lshl_b32 {sT2}, {sH}, 6
    s_add_u32 {sT}, {sT}, {sT2}
    v_add_u32 {g_pst}, {sT}, {t0}
    v_lshlrev_b32 {t0}, 8, {g}
    v_and_b32 {t1}, 8, {c}
    v_lshlrev_b32 {t1}, 4, {t1}
    v_add_u32 {t0}, {t0}, {t1}
    v_and_b32 {t1}, 2, {c}
    v_lshlrev_b32 {t1}, 5, {t1}
    v_add_u32 {t0}, {t0}, {t1}
    v_and_b32 {t1}, 4, {c}
    v_lshlrev_b32 {t1}, 3, {t1}
    v_add_u32 {t0}, {t0}, {t1}
    v_and_b32 {t1}, 1, {c}
    v_lshlrev_b32 {t1}, 4, {t1}
    v_add_u32 {t0}, {t0}, {t1}
    s_lshl_b32 {sT}, {sH}, 2
    s_add_u32 {sT}, {sT}, {sWv}
    s_lshl_b32 {sT}, {sT}, 11
    v_add_u32 {g_pld}, {sT}, {t0}
    s_lshr_b32 {sT}, {sH}, 2
    s_lshl_b32 {sT}, {sT}, 10
    s_and_b32 {sT2}, {sH}, 2
    s_lshl_b32 {sT2}, {sT2}, 8
    s_add_u32 {sT}, {sT}, {sT2}
    s_and_b32 {sT2}, {sH}, 1
    s_lshl_b32 {sT2}, {sT2}, 7
    s_add_u32 {sT}, {sT}, {sT2}
    s_and_b32 {sT2}, {sWv}, 2
    s_lshl_b32 {sT2}, {sT2}, 5
    s_add_u32 {sT}, {sT}, {sT2}
    s_and_b32 {sT2}, {sWv}, 1
    s_lshl_b32 {sT2}, {sT2}, 4
    s_add_u32 {sT}, {sT}, {sT2}
    v_and_b32 {t0}, 1, {g}
    v_lshlrev_b32 {t0}, 8, {t0}
    v_and_b32 {t1}, 2, {g}
    v_lshlrev_b32 {t1}, 4, {t1}
    v_add_u32 {t0}, {t0}, {t1}
    v_and_b32 {t1}, 6, {c}
    v_lshlrev_b32 {t1}, 1, {t1}
    v_add_u32 {t0}, {t0}, {t1}
    v_add_u32 {t0}, {sT}, {t0}
    v_and_b32 {t1}, 9, {c}
    v_cmp_eq_u32 vcc, 0, {t1}
    v_mov_b32 {t1}, 0x40000000
    v_cndmask_b32 {g_pub}, {t1}, {t0}, vcc
    v_and_b32 {t0}, 1, {c}
    v_lshlrev_b32 {t0}, 4, {t0}
    v_mov_b32 {t1}, 0x3f80
    v_lshlrev_b32 {t0}, {t0}, {t1}
    v_lshrrev_b32 {t1}, 1, {c}
    ''')
    for j in range(4):
        P(f'''
        v_cmp_eq_u32 vcc, {j}, {t1}
        v_cndmask_b32 {V(48 + j)}, 0, {t0}, vcc''')
    P(f'''
    ds_write_b128 {lane16}, {V(48, 4)} offset:{L_SEL}
    s_mov_b32 {sP[0]}, {WS_P}
    s_mov_b32 {sP[1]}, {WS_P + P_SZ}
    s_mov_b32 {sM[0]}, {WS_M}
    s_mov_b32 {sM[1]}, {WS_M + M_SZ}
    s_lshl_b32 {sT}, {sWv}, 11
    s_add_u32 {sMw[0]}, {sT}, {WS_M}
    s_add_u32 {sMw[1]}, {sT}, {WS_M + M_SZ}
    s_mov_b32 {sM0[0]}, {sT}
    s_add_u32 {sM0[1]}, {sT}, 8192
    s_lshl_b32 {sT2}, {sH}, 13
    s_add_u32 {sT2}, {sT2}, {sT}
    s_add_u32 {sKV}, {sT2}, {WS_K}
    s_add_u32 {sVV}, {sT2}, {WS_V}
    s_lshr_b32 {sT2}, {sT2}, 1
    s_add_u32 {sEX}, {sT2}, {WS_EK}
    s_add_u32 {sEV}, {sT2}, {WS_EV}
    s_lshl_b32 {sT}, {sH}, 7
    s_lshl_b32 {sT2}, {sWv}, 2
    s_add_u32 {sXF}, {sT}, {sT2}
    s_add_u32 {sXF}, {sXF}, {WS_XF}
    s_lshl_b32 {sT2}, {sWv}, 5
    s_add_u32 {sKF}, {sT}, {sT2}
    s_add_u32 {sKF}, {sKF}, {WS_KF}
    s_mov_b32 {sRDY}, 0
    s_mov_b32 {sS}, 0
    s_mov_b32 {sCNT}, 0
    ''')


def arm(P):
    n1 = V(52, 4)
    P(f'''
    v_mov_b32 {n1[0]}, -1
    v_mov_b32 {n1[1]}, -1
    v_mov_b32 {n1[2]}, -1
    v_mov_b32 {n1[3]}, -1''')
    for p in range(2):
        P(f'''
        buffer_store_dwordx4 {n1}, {g_pld}, {sWS}, {sP[p]} offen sc1
        buffer_store_dwordx4 {n1}, {g_pld}, {sWS}, {sP[p]} offen offset:1024 sc1
        buffer_store_dword {n1[0]}, {g_pub}, {sWS}, {sM[p]} offen sc1''')
    P(f'buffer_store_dword {z0}, off, {sWS}, {sXF} sc1')


def load_weights(P):
    va = V(56)
    t0, t1, l = V(57), V(58), V(59)
    sLo, sHi, sB = 's40', 's41', 's42'
    TMP = [V(60 + 16 * i, 16) for i in range(4)]
    pt = [V(124), V(125), V(126), V(127)]
    P(f'''
    s_mov_b32 {sLo}, 0x05040100
    s_mov_b32 {sHi}, 0x07060302
    v_lshrrev_b32 {l}, 4, {lane16}
    v_and_b32 {t0}, 32, {l}
    v_lshlrev_b32 {t0}, 12, {t0}
    v_and_b32 {t1}, 16, {l}
    v_lshlrev_b32 {t1}, 11, {t1}
    v_add_u32 {t0}, {t0}, {t1}
    v_and_b32 {t1}, 15, {l}
    v_lshlrev_b32 {t1}, 2, {t1}
    v_add_u32 {t0}, {t0}, {t1}
    s_lshl_b32 {sT}, {sH}, 8
    s_lshl_b32 {sT2}, {sWv}, 6
    s_add_u32 {sT}, {sT}, {sT2}
    v_add_u32 {va}, {sT}, {t0}
    ''')
    k = [0]

    def put(tile, d, hi_src, lo_src, sel):
        if tile in LSLOT:
            r = pt[k[0] % 4]; k[0] += 1
            P(f'v_perm_b32 {r}, {hi_src}, {lo_src}, {sel}')
            P(f'ds_write_b32 {a_w}, {r} offset:{LSLOT[tile] * 2048 + (d // 4) * 1024 + (d % 4) * 4}')
        elif WREG[tile].k == 'a':
            r = pt[k[0] % 4]; k[0] += 1
            P(f'v_perm_b32 {r}, {hi_src}, {lo_src}, {sel}')
            P(f'v_accvgpr_write_b32 {WREG[tile][d]}, {r}')
        else:
            P(f'v_perm_b32 {WREG[tile][d]}, {hi_src}, {lo_src}, {sel}')

    groups = [(m, b) for m in 'qkv' for b in range(8)]
    srd = {'q': 's[44:47]', 'k': 's[48:51]', 'v': 's[52:55]', 'o': 's[56:59]'}

    def issue(i):
        m, b = groups[i]
        P(f'''
        s_lshl_b32 {sB}, {sWv}, 1
        s_xor_b32 {sB}, {sB}, {b}
        s_lshl_b32 {sB}, {sB}, 19''')
        for d in range(8):
            for u in range(2):
                row = 32 * (d // 4) + 8 * (d % 2) + 2 * ((d % 4) // 2) + u
                P(f's_add_u32 {sT}, {sB}, {row * 8192}')
                P(f'buffer_load_dword {TMP[i % 4][2 * d + u]}, {va}, {srd[m]}, {sT} offen')

    def finish(i):
        m, b = groups[i]
        for d in range(8):
            put((m, b, 0), d, TMP[i % 4][2 * d + 1], TMP[i % 4][2 * d], sLo)
            put((m, b, 1), d, TMP[i % 4][2 * d + 1], TMP[i % 4][2 * d], sHi)

    vo = V(57)
    ogroups = [(s, d) for s in range(2) for d in range(8)]
    OT = [V(60 + 8 * i, 8) for i in range(8)]

    def oissue(j):
        s, d = ogroups[j]
        for u in range(2):
            row = 64 * s + 32 * (d // 4) + 4 * ((d % 4) // 2) + 2 * u + (d % 2)
            P(f's_mov_b32 {sT}, {row * 1024}')
            P(f'buffer_load_dwordx4 {OT[j % 8][4 * u:4 * u + 4]}, {vo}, {srd["o"]}, {sT} offen')

    def ofinish(j):
        s, d = ogroups[j]
        for t in range(8):
            put(('o', s, t), d, OT[j % 8][4 + t // 2], OT[j % 8][t // 2], sHi if t % 2 else sLo)

    for i in range(3):
        issue(i)
    P(f'''
    v_and_b32 {vo}, 32, {l}
    v_lshlrev_b32 {vo}, 9, {vo}
    v_and_b32 {t1}, 16, {l}
    v_lshlrev_b32 {t1}, 9, {t1}
    v_add_u32 {vo}, {vo}, {t1}
    v_and_b32 {t1}, 15, {l}
    v_lshlrev_b32 {t1}, 4, {t1}
    v_add_u32 {vo}, {vo}, {t1}
    s_lshl_b32 {sT}, {sH}, 17
    s_lshl_b32 {sT2}, {sWv}, 8
    s_add_u32 {sT}, {sT}, {sT2}
    v_add_u32 {vo}, {sT}, {vo}
    ''')
    n = len(groups)
    for i in range(n):
        if i + 3 < n:
            issue(i + 3)
        finish(i)
        if i >= n - 4:
            oissue(2 * (i - n + 4))
            oissue(2 * (i - n + 4) + 1)
    for j in range(16):
        ofinish(j)
        if j + 8 < 16:
            oissue(j + 8)


def kv_ready(P, tag):
    t0, t1 = mem[24], mem[25]
    P(f'''
    s_add_u32 {sT}, {sS}, 1
    s_min_u32 {sT}, {sT}, 62
    s_cmp_lt_u32 {sT}, {sRDY}
    s_cbranch_scc1 L_kvok_{tag}''')
    P.label(f'L_kvpoll_{tag}', keep=True)
    P(f'''
    v_lshrrev_b32 {t0}, 2, {lane16}
    v_and_b32 {t0}, 28, {t0}
    buffer_load_dword {t1}, {t0}, {sWS}, {sKF} offen sc1
    s_waitcnt vmcnt(0)
    v_mul_u32_u24 {t1}, 7, {t1}
    s_mov_b32 {sRDY}, 64''')
    for t in range(1, 8):
        P(f'''
        v_readlane_b32 {sT2}, {t1}, {t}
        s_add_u32 {sT2}, {sT2}, {t - 1}
        s_min_u32 {sRDY}, {sRDY}, {sT2}''')
    P(f'''
    s_add_u32 {sCNT}, {sCNT}, 1
    s_cmp_gt_u32 {sCNT}, 0x40000
    s_cbranch_scc1 L_bail
    s_cmp_lt_u32 {sT}, {sRDY}
    s_cbranch_scc0 L_kvpoll_{tag}''')
    P.label(f'L_kvok_{tag}', keep=True)


def prefetch_kv(p):
    return [f's_mov_b32 m0, {sM0[p]}',
            f'buffer_load_dwordx4 {VX[p][0:4]}, {lane16}, {sWS}, {sVV} offen sc1',
            f'buffer_load_dwordx4 {lane16}, {sWS}, {sKV} offen sc1 lds',
            f'buffer_load_dwordx4 {VX[p][4:8]}, {lane16}, {sWS}, {sVV} offen offset:1024 sc1',
            f'buffer_load_dwordx4 {lane16}, {sWS}, {sKV} offen offset:1024 sc1 lds',
            f's_add_u32 {sKV}, {sKV}, {SEG_SZ}',
            f's_add_u32 {sVV}, {sVV}, {SEG_SZ}']


def check8(r, t):
    return [f'v_max3_u32 {t}, {r[0]}, {r[1]}, {r[2]}',
            f'v_max3_u32 {t}, {t}, {r[3]}, {r[4]}',
            f'v_max3_u32 {t}, {t}, {r[5]}, {r[6]}',
            f'v_max_u32 {t}, {t}, {r[7]}',
            f'v_cmp_eq_u32 vcc, -1, {t}']


def poll_mem(P, p, tag, ool):
    P.label(f'L_pb_{tag}', keep=True)
    P(f'''
    buffer_load_dwordx4 {mem[0:4]}, {lane16}, {sWS}, {sMw[p]} offen sc1
    buffer_load_dwordx4 {mem[4:8]}, {lane16}, {sWS}, {sMw[p]} offen offset:1024 sc1
    s_waitcnt vmcnt(0)''')
    P('\n'.join(check8(mem, mem[8])))
    P(f's_cbranch_vccnz L_rb_{tag}')
    ool.append(f'''
L_rb_{tag}:
    s_add_u32 {sCNT}, {sCNT}, 1
    s_cmp_lt_u32 {sCNT}, 0x100000
    s_cbranch_scc1 L_pb_{tag}
    s_branch L_bail''')


def memblk(b):
    return mem[4 * b:4 * b + 4]


def post_qk(acc):
    return [f'v_add_f32 {acc[0]}, {acc[0]}, {acc[2]}', f'v_add_f32 {acc[1]}, {acc[1]}, {acc[3]}',
            f'v_add_f32 {acc[4]}, {acc[4]}, {acc[6]}', f'v_add_f32 {acc[5]}, {acc[5]}, {acc[7]}',
            f'v_cvt_pk_bf16_f32 {acc[0]}, {acc[0]}, {acc[1]}', f'v_cvt_pk_bf16_f32 {acc[2]}, {acc[4]}, {acc[5]}']


def post_v():
    a = vacc
    return [f'v_add_f32 {a[0]}, {a[0]}, {a[2]}', f'v_add_f32 {a[1]}, {a[1]}, {a[3]}',
            f'v_cvt_pk_bf16_f32 {vb0}, {a[0]}, {a[1]}',
            f'v_add_f32 {a[4]}, {a[4]}, {a[6]}', f'v_add_f32 {a[5]}, {a[5]}, {a[7]}',
            f'v_cvt_pk_bf16_f32 {vb1}, {a[4]}, {a[5]}']


def tr_reads(dst, off, n):
    fl = [dst[0][0:2], dst[0][2:4], dst[0][4:6], dst[0][6:8]] + ([dst[1][0:2], dst[1][2:4], dst[1][4:6], dst[1][6:8]] if n > 4 else [])
    return [f'ds_read_b64_tr_b16 {fl[i]}, {a_qr} offset:{off + (i // 2) * 256 + (i % 2) * 64}' for i in range(n)]


DROP = []
def emit(P, seq):
    for x in seq:
        if isinstance(x, str) and any(d(x) for d in DROP):
            continue
        if isinstance(x, str):
            P(x)
        elif isinstance(x, tuple):
            P(x[0], x[1])
        else:
            P.items.append(x)


def W(cls, tag=None):
    return Wait(cls, tag)


def step(P, p, mode, tag, ool, stamp=None):
    sc = ' sc1' if mode == 'slow' else ''
    st = lambda n: []
    T = lambda m, b, t: WREG[(m, b, t)]
    qa = lambda t: qacc[4 * t:4 * t + 4]
    ka = lambda t: kacc[4 * t:4 * t + 4]
    va = lambda t: vacc[4 * t:4 * t + 4]
    bg = prefetch_kv(1 - p)
    flag = [f'v_mov_b32 {mem[31]}, {sS}', f'buffer_store_dword {mem[31]}, off, {sWS}, {sXF} sc1']
    S = []
    S += st(0)
    S += [(f'ds_write_b128 {a_memw}, {memblk(0)}', 'mw'), (f'ds_write_b128 {a_memw}, {memblk(1)} offset:1024', 'mw')]
    S += [smf(qa(0), memblk(0), F[0]), f's_mov_b64 vcc, {sHF}', bg[0], smf(qa(1), memblk(0), F[1]), bg[1],
          smf(ka(0), memblk(0), T('k', 0, 0)), bg[2], smf(ka(1), memblk(0), T('k', 0, 1)), flag[0],
          smf(qa(0), memblk(1), F[2]), smf(qa(1), memblk(1), F[3]),
          W('lgkm', 'mw'), 's_barrier']
    for j in (1, 2, 3):
        S += [f'ds_read_b128 {memblk(2 * j)}, {a_memr[j]}']
        if j == 3:
            S += [flag[1]]
        S += [f'ds_read_b128 {memblk(2 * j + 1)}, {a_memr[j]} offset:1024']
    S += [smf(ka(0), memblk(1), T('k', 1, 0)), bg[3], smf(ka(1), memblk(1), T('k', 1, 1)), bg[4],
          smf(va(0), memblk(0), T('v', 0, 0)), bg[5], bg[6], smf(va(1), memblk(0), T('v', 0, 1))]
    refill = ld_tile(('q', 6, 0), F[0]) + ld_tile(('q', 6, 1), F[1]) + ld_tile(('q', 7, 0), F[2]) + ld_tile(('q', 7, 1), F[3])
    qs = [smf(qa(t), memblk(b), T('q', b, t)) for b in range(2, 6) for t in range(2)]
    S += merge(qs, refill)
    S += [smf(qa(0), memblk(6), F[0]), smf(qa(1), memblk(6), F[1]), smf(qa(0), memblk(7), F[2]), smf(qa(1), memblk(7), F[3])]
    S += st(1)
    kx = lambda s_, t, dst: f'ds_read_b128 {dst}, {lane16} offset:{L_KX + p * 8192 + s_ * 2048 + t * 1024}'
    KA = [F[2][0:4], F[2][4:8], F[3][0:4], F[3][4:8]]
    ks = [smf(ka(t), memblk(b), T('k', b, t)) for b in range(2, 8) for t in range(2)]
    pq = post_qk(qacc)
    qr = tr_reads([F[0], F[1]], QOFF, 8)
    S += [ks[0], kx(0, 0, KA[0]), kx(0, 1, KA[1]), ks[1], kx(1, 0, KA[2]), kx(1, 1, KA[3]), ks[2], pq[0], ks[3], pq[1], pq[2], ks[4], pq[3], pq[4],
          ks[5], pq[5], (f'ds_write_b128 {a_qw}, {qacc[0:4]} offset:{QOFF}', 'qw'), ks[6], ks[7], ks[8],
          W('lgkm', 'qw'), 's_barrier', qr[0], qr[1], ks[9], qr[2], qr[3], qr[4], ks[10], qr[5], qr[6], qr[7], ks[11]]
    S += st(2)
    QB = [F[0][0:4], F[0][4:8], F[1][0:4], F[1][4:8]]
    X = [qacc[0:4], qacc[4:8]]
    M = kacc[4:8]
    sx = lambda s_, t, a_: f'v_mfma_f32_16x16x32_bf16 {X[t]}, {a_}, {QB[s_]}, {X[t] if s_ else 0}'
    sm = lambda s_: f'v_mfma_f32_16x16x32_bf16 {M}, {KA[s_]}, {QB[s_]}, {M if s_ else 0}'
    vs = [smf(va(t), memblk(b), T('v', b, t)) for b in range(1, 8) for t in range(2)]
    pk = post_qk(kacc)
    wo = lambda t, s_, dst: ld_tile(('o', s_, t), dst)
    MT = [mem[0:8], mem[8:16], mem[16:24], mem[24:32]]
    WOS = {(0, 0): MT[0], (0, 1): MT[1], (1, 0): MT[2], (1, 1): F[2], (2, 0): F[3], (2, 1): MT[3], (3, 0): MT[0], (3, 1): MT[1]}
    kr = tr_reads([F[2], F[3]], 0, 8)
    S += [sx(0, 0, KA[0]), sx(0, 1, KA[1]), kx(2, 0, KA[0]), kx(2, 1, KA[1]), sx(1, 0, KA[2]), pk[0], pk[1], sx(1, 1, KA[3]), kx(3, 0, KA[2]), kx(3, 1, KA[3]),
          pk[2], pk[3], vs[0], pk[4], vs[1], pk[5], (f'ds_write_b128 {a_qw}, {kacc[0:4]}', 'kw')]
    S += [sx(2, 0, KA[0]), sx(2, 1, KA[1]), sx(3, 0, KA[2]), sx(3, 1, KA[3]), W('lgkm', None), 's_barrier']
    E = X[1]
    cn = lambda i: f'v_cndmask_b32_dpp {X[0][i]}, {X[1][i]}, {X[0][i]}, vcc quad_perm:[0,1,0,1] row_mask:0xf bank_mask:0xf'
    ex = lambda i: f'v_exp_f32 {E[i]}, {X[0][i]}'
    w0 = wo(0, 0, WOS[(0, 0)]); w1 = wo(0, 1, WOS[(0, 1)]); w2 = wo(1, 0, WOS[(1, 0)])
    w3 = wo(1, 1, WOS[(1, 1)]); w4 = wo(2, 0, WOS[(2, 0)]); w5 = wo(2, 1, WOS[(2, 1)])
    S += [kr[0], kr[1], kr[2], vs[2], kr[3], kr[4], kr[5], vs[3], kr[6], kr[7], w0[0], vs[4], w0[1], cn(0), vs[5], cn(1), vs[6], cn(2),
          sm(0), cn(3), sm(1), ex(0), sm(2), ex(1), sm(3)]
    S += st(3)
    Ds, O = F[0][0:4], [F[0][4:8], F[1][0:4]]
    zpv = zero(F[0]) + zero(F[1][0:4])
    S += [w1[0], ex(2), vs[7], w1[1], ex(3), vs[8], w3[0], zpv[0], vs[9], w3[1],
          f'v_cndmask_b32_dpp {M[0]}, {M[1]}, {M[0]}, vcc quad_perm:[0,1,0,1] row_mask:0xf bank_mask:0xf',
          f'v_mul_f32 {M[0]}, {sC2}, {M[0]}', vs[10], w2[0], f'v_exp_f32 {M[1]}, {M[0]}', w2[1],
          vs[11], f'v_max3_f32 {M[2]}, |{X[0][0]}|, |{X[0][1]}|, |{X[0][2]}|', w4[0], zpv[1],
          vs[12], f'v_max3_f32 {M[2]}, {M[2]}, |{X[0][3]}|, |{M[0]}|', w4[1], zpv[2],
          vs[13], f'v_cmp_nle_f32 vcc, {M[2]}, {sLIM}', zpv[3], zpv[4], zpv[5], w5[0], w5[1],
          f's_cbranch_vccnz L_sm_{tag}', Label(f'L_smr_{tag}', keep=True),
          f'v_cvt_pk_bf16_f32 {E[0]}, {E[0]}, {E[1]}', f'v_cvt_pk_bf16_f32 {E[1]}, {E[2]}, {E[3]}',
          f'v_cvt_pk_bf16_f32 {dm}, {M[1]}, {M[1]}', f'v_and_b32 {dm}, {andm}, {dm}']
    ool.append(f'''
L_sm_{tag}:
    v_max3_f32 {M[2]}, {X[0][0]}, {X[0][1]}, {X[0][2]}
    v_max3_f32 {M[2]}, {M[2]}, {X[0][3]}, {M[0]}
    v_max_f32_dpp {M[2]}, {M[2]}, {M[2]} quad_perm:[2,3,0,1] row_mask:0xf bank_mask:0xf
    v_mov_b32 {M[3]}, {M[2]}
    v_permlane16_swap_b32 {M[2]}, {M[3]}
    v_max_f32 {M[2]}, {M[2]}, {M[3]}
    v_mov_b32 {M[3]}, {M[2]}
    v_permlane32_swap_b32 {M[2]}, {M[3]}
    v_max_f32 {M[2]}, {M[2]}, {M[3]}
    v_sub_f32 {E[0]}, {X[0][0]}, {M[2]}
    v_sub_f32 {E[1]}, {X[0][1]}, {M[2]}
    v_sub_f32 {E[2]}, {X[0][2]}, {M[2]}
    v_sub_f32 {E[3]}, {X[0][3]}, {M[2]}
    v_sub_f32 {M[1]}, {M[0]}, {M[2]}
    v_exp_f32 {E[0]}, {E[0]}
    v_exp_f32 {E[1]}, {E[1]}
    v_exp_f32 {E[2]}, {E[2]}
    v_exp_f32 {E[3]}, {E[3]}
    v_exp_f32 {M[1]}, {M[1]}
    s_branch L_smr_{tag}''')
    pvx = lambda d, b: f'v_smfmac_f32_16x16x32_bf16 {d}, {E[0:2]}, {b}, {idx}'
    pvm = lambda d, b: f'v_mfma_f32_16x16x16_bf16 {d}, v[{dm.n}:{dm.n + 1}], {b}, {d}'
    pv_ = post_v()
    EK = F[1][4:8]
    S += [pvx(Ds, ones), pv_[0], pvm(Ds, ones[0:2]), pv_[1], pv_[2], pvx(O[0], VX[p][0:4]), pv_[3], pvm(O[0], f'v[{vb0.n}:{vb0.n + 1}]'), pv_[4], pv_[5],
          pvx(O[1], VX[p][4:8]), f'ds_read_b64_tr_b16 {EK[0:2]}, {a_qx}', f'ds_read_b64_tr_b16 {EK[2:4]}, {a_qx} offset:64',
          pvm(O[1], f'v[{vb1.n}:{vb1.n + 1}]')]
    S += st(4)
    OA = [qacc[0:4], qacc[4:8], kacc[0:4], kacc[4:8], vacc[0:4], vacc[4:8], O[0], O[1]]
    zo = zero(qacc) + zero(kacc) + zero(vacc)
    S += [f'v_add_f32 {Ds[0]}, {Ds[0]}, {Ds[2]}', f'v_add_f32 {Ds[1]}, {Ds[1]}, {Ds[3]}',
          f'v_rcp_f32 {Ds[0]}, {Ds[0]}', f'v_rcp_f32 {Ds[1]}, {Ds[1]}',
          f'v_add_f32 {O[0][0]}, {O[0][0]}, {O[0][2]}', f'v_add_f32 {O[0][1]}, {O[0][1]}, {O[0][3]}',
          f'v_mul_f32 {O[0][0]}, {O[0][0]}, {Ds[0]}', f'v_mul_f32 {O[0][1]}, {O[0][1]}, {Ds[1]}',
          f'v_add_f32 {O[1][0]}, {O[1][0]}, {O[1][2]}', f'v_add_f32 {O[1][1]}, {O[1][1]}, {O[1][3]}',
          f'v_mul_f32 {O[1][0]}, {O[1][0]}, {Ds[0]}', f'v_mul_f32 {O[1][1]}, {O[1][1]}, {Ds[1]}',
          f'v_cvt_pk_bf16_f32 {Ds[2]}, {O[0][0]}, {O[0][1]}', f'v_cvt_pk_bf16_f32 {Ds[3]}, {O[1][0]}, {O[1][1]}',
          (f'ds_write_b64 {a_ow}, {Ds[2:4]} offset:{QOFF}', 'ow')]
    S += zo[0:6]
    S += [W('lgkm', 'ow'), 's_barrier']
    orr = tr_reads([VX[p]], QOFF, 4)
    S += orr
    S += zo[6:12] + zero(O[0]) + zero(O[1])
    S += [f'buffer_store_dwordx4 {EK}, {lane16}, {sWS}, {sEX} offen sc1',
          f'buffer_store_dwordx4 v[{vb0.n}:{vb0.n + 3}], {lane16}, {sWS}, {sEV} offen sc1']
    S += st(5)
    OAop = [VX[p][0:4], VX[p][4:8]]
    wt = lambda t, s_: WOS[(t, s_)] if t < 4 else T('o', s_, t)
    om = lambda t, s_: smf(OA[t], OAop[s_], wt(t, s_))
    Y = [F[0][0:4], F[1][4:8]]
    def opost(j):
        a, b = OA[2 * j], OA[2 * j + 1]
        return [f'v_add_f32 {a[0]}, {a[0]}, {a[2]}', f'v_add_f32 {b[0]}, {b[0]}, {b[2]}',
                f'v_add_f32 {a[1]}, {a[1]}, {a[3]}', f'v_add_f32 {b[1]}, {b[1]}, {b[3]}',
                f'v_cvt_pk_bf16_f32 {Y[0][j]}, {a[0]}, {b[0]}', f'v_cvt_pk_bf16_f32 {Y[1][j]}, {a[1]}, {b[1]}']
    w6 = wo(3, 0, WOS[(3, 0)]); w7 = wo(3, 1, WOS[(3, 1)])
    o0, o2, o3, o1 = opost(0), opost(2), opost(3), opost(1)
    S += [om(0, 0), w6[0], w6[1], om(1, 0), om(0, 1), w7[0], w7[1], om(1, 1),
          om(4, 0), f's_add_u32 {sEX}, {sEX}, {ESEG_SZ}', om(5, 0), f's_add_u32 {sEV}, {sEV}, {ESEG_SZ}', om(4, 1), o0[0], om(5, 1), o0[1], o0[2],
          om(6, 0), o0[3], om(7, 0), o0[4], o0[5], om(6, 1), o2[0], om(7, 1), o2[1], o2[2],
          om(2, 0), o2[3], om(3, 0), o2[4], o2[5], om(2, 1), o3[0], om(3, 1), o3[1], o3[2], o3[3], o3[4], o3[5]]
    S += o1
    S += [f'buffer_store_dwordx4 {Y[0]}, {g_pst}, {sWS}, {sP[p]} offen{sc}',
          f'buffer_store_dwordx4 {Y[1]}, {g_pst}, {sWS}, {sP[p]} offen offset:2048{sc}']
    S += st(6)
    sel, D, n1, pd = mem[16:20], mem[20:24], mem[28:32], mem[0:8]
    S += [f'ds_read_b128 {sel}, {lane16} offset:{L_SEL}', f's_add_u32 {sS}, {sS}, 1']
    S += ld_tile(('q', 0, 0), F[0]) + ld_tile(('q', 0, 1), F[1]) + ld_tile(('q', 1, 0), F[2]) + ld_tile(('q', 1, 1), F[3])
    S += zero(qacc) + zero(kacc) + zero(vacc) + [f'v_mov_b32 {n1[i]}, -1' for i in range(4)]
    S += [W('lgkm', None)]
    if stamp is not None:
        S2, k = [], 0
        for i, x in enumerate(S):
            if i in stamp:
                S2.append(Raw(f'  s_memtime s[{60 + 2 * k}:{61 + 2 * k}]'))
                k += 1
            S2.append(x)
        S = S2
        global LAST_S
        LAST_S = S
    emit(P, S)
    kv_ready(P, tag)
    P.label(f'L_pa_{tag}', keep=True)
    ck = check8(pd, mem[8])
    emit(P, [f'buffer_load_dwordx4 {pd[0:4]}, {g_pld}, {sWS}, {sP[p]} offen sc1',
             f'buffer_load_dwordx4 {pd[4:8]}, {g_pld}, {sWS}, {sP[p]} offen offset:1024 sc1',
             's_waitcnt vmcnt(1)',
             f'v_mfma_f32_16x16x32_bf16 {D}, {pd[0:4]}, {sel}, 0',
             's_waitcnt vmcnt(0)',
             f'v_mfma_f32_16x16x32_bf16 {D}, {pd[4:8]}, {sel}, {D}'] + ck + [f's_cbranch_vccnz L_ra_{tag}'])
    ool.append(f'''
L_ra_{tag}:
    s_add_u32 {sCNT}, {sCNT}, 1
    s_cmp_lt_u32 {sCNT}, 0x100000
    s_cbranch_scc1 L_pa_{tag}
    s_branch L_bail''')
    S = st(7)
    S += [f'v_add_f32 {D[0]}, {D[0]}, {D[2]}', f'v_add_f32 {D[1]}, {D[1]}, {D[3]}',
          f'v_permlane32_swap_b32 {D[0]}, {D[1]}', f'v_add_f32 {D[0]}, {D[0]}, {D[1]}',
          f'v_mov_b32_dpp {D[1]}, {D[0]} quad_perm:[1,0,3,2] row_mask:0xf bank_mask:0xf',
          f'v_cvt_pk_bf16_f32 {D[0]}, {D[0]}, {D[1]}',
          f'buffer_store_dword {D[0]}, {g_pub}, {sWS}, {sM[1 - p]} offen{sc}',
          f'buffer_store_dword {n1[0]}, {g_pub}, {sWS}, {sM[p]} offen{sc}',
          f'buffer_store_dwordx4 {n1}, {g_pld}, {sWS}, {sP[p]} offen{sc}',
          f'buffer_store_dwordx4 {n1}, {g_pld}, {sWS}, {sP[p]} offen offset:1024{sc}']
    S += st(8)
    emit(P, S)


def final_step(P):
    T = lambda m, b, t: WREG[(m, b, t)]
    S = [(f'ds_write_b128 {a_memw}, {memblk(0)}', 'mw'), (f'ds_write_b128 {a_memw}, {memblk(1)} offset:1024', 'mw'),
         f'v_mov_b32 {F[0][0]}, {sS}', f'buffer_store_dword {F[0][0]}, off, {sWS}, {sXF} sc1']
    mm = lambda b: [smf(kacc[4 * t:4 * t + 4], memblk(b), T('k', b, t)) for t in range(2)]
    vv = lambda b: [smf(vacc[4 * t:4 * t + 4], memblk(b), T('v', b, t)) for t in range(2)]
    S += mm(0) + mm(1) + vv(0) + [W('lgkm', 'mw'), 's_barrier']
    for j in (1, 2, 3):
        S += [f'ds_read_b128 {memblk(2 * j)}, {a_memr[j]}', f'ds_read_b128 {memblk(2 * j + 1)}, {a_memr[j]} offset:1024']
    S += vv(1)
    for b in range(2, 8):
        S += mm(b)
    S += vv(2) + vv(3) + post_qk(kacc) + [(f'ds_write_b128 {a_qw}, {kacc[0:4]} offset:{QOFF}', 'kw')] + vv(4) + vv(5) + vv(6)
    S += [W('lgkm', 'kw'), 's_barrier']
    EK = F[1][4:8]
    S += [f'ds_read_b64_tr_b16 {EK[0:2]}, {a_qx} offset:{QOFF}', f'ds_read_b64_tr_b16 {EK[2:4]}, {a_qx} offset:{QOFF + 64}']
    S += vv(7) + [f'buffer_store_dwordx4 {EK}, {lane16}, {sWS}, {sEX} offen sc1'] + post_v()
    S += [f'buffer_store_dwordx4 v[{vb0.n}:{vb0.n + 3}], {lane16}, {sWS}, {sEV} offen sc1',
          f'v_mov_b32 {F[0][1]}, 64', 's_waitcnt vmcnt(0)', f'buffer_store_dword {F[0][1]}, off, {sWS}, {sXF} sc1']
    emit(P, S)


def first_mem(P):
    t0, t1, l = mem[8], mem[9], mem[10]
    P(f'''
    v_lshrrev_b32 {l}, 4, {lane16}
    v_and_b32 {t0}, 12, {l}
    v_lshlrev_b32 {t0}, 9, {t0}
    v_and_b32 {t1}, 1, {l}
    v_lshlrev_b32 {t1}, 10, {t1}
    v_add_u32 {t0}, {t0}, {t1}
    v_and_b32 {t1}, 2, {l}
    v_lshlrev_b32 {t1}, 3, {t1}
    v_add_u32 {t0}, {t0}, {t1}
    v_and_b32 {t1}, 48, {l}
    v_lshlrev_b32 {t1}, 1, {t1}
    v_add_u32 {t0}, {t0}, {t1}
    s_lshl_b32 {sT}, {sWv}, 8
    buffer_load_dwordx4 {mem[0:4]}, {t0}, {sW}, {sT} offen
    buffer_load_dwordx4 {mem[4:8]}, {t0}, {sW}, {sT} offen offset:128
    ''')
    emit(P, ld_tile(('q', 0, 0), F[0]) + ld_tile(('q', 0, 1), F[1]) + ld_tile(('q', 1, 0), F[2]) + ld_tile(('q', 1, 1), F[3]))
    emit(P, zero(qacc) + zero(kacc) + zero(vacc))


def loops(P, modes=('fast',), stamp=None, hook=None):
    ool = []
    for mode in modes:
        P.label(f'L_chain_{mode}')
        P(f's_mov_b32 {sS}, -1')
        kv_ready(P, f'{mode}_i')
        P(f's_mov_b32 {sS}, 0')
        emit(P, prefetch_kv(0))
        kv_ready(P, f'{mode}_j')
        P('s_waitcnt vmcnt(0) lgkmcnt(0)')
        if hook: hook(P, 'start')
        P(f's_branch L_in_{mode}')
        P.label(f'L_top_{mode}')
        poll_mem(P, 0, f'{mode}0', ool)
        P.label(f'L_in_{mode}')
        step(P, 0, mode, f'{mode}0', ool, stamp)
        poll_mem(P, 1, f'{mode}1', ool)
        if hook: hook(P, 'mid')
        P(f's_cmp_eq_u32 {sS}, 63')
        P(f's_cbranch_scc1 L_final')
        step(P, 1, mode, f'{mode}1', ool)
        P(f's_branch L_top_{mode}')
    P.label('L_final')
    final_step(P)
    if hook: hook(P, 'end')
    P('s_endpgm')
    for o in ool:
        P(o)
```

```python
WS_SIZE = 1 << 28
WS_P   = 0x0000000
P_SZ   = 0x40000
WS_M   = 0x0080000
M_SZ   = 0x2000
WS_XF  = 0x0088000
WS_KF  = 0x008A000
WS_NF  = 0x008C000
WS_F1  = 0x008D000
WS_K   = 0x1000000
WS_V   = 0x2000000
WS_Q   = 0x3000000
WS_EK  = 0x4000000
WS_EV  = 0x4800000
WS_XN  = 0x5000000
WS_PA  = 0x5400000
WS_PB  = 0x5C00000
WS_HN  = 0x6400000
WS_DBG = 0x7000000
SEG_SZ = 32 * 8192
ESEG_SZ = 32 * 4096
C2 = 1.4426950408889634 / (128 ** 0.5)
KA_X, KA_MEM0, KA_WQ, KA_WK, KA_WV, KA_WO, KA_W1, KA_W3, KA_W2, KA_OUT, KA_DBG, KA_WS = 0, 8, 16, 24, 32, 40, 64, 72, 80, 88, 96, 104
```

```python
from asmgen import *
from layout import *
from chain import fbits, emit, W, zero
import struct

V = lambda n, c=1: Reg('v', n, c)
A = lambda n, c=1: Reg('a', n, c)
sWS = 's[4:7]'; sX = 's[8:11]'
sH, sWv, sTM, sN = 's12', 's13', 's14', 's15'
sI, sSEG, sT, sT2 = 's16', 's17', 's18', 's19'
sC2, sCNT, sB = 's22', 's24', 's25'
sLo, sHi = 's40', 's41'
SRD = {'q': 's[44:47]', 'k': 's[48:51]', 'v': 's[52:55]', 'o': 's[56:59]', '1': 's[60:63]', '3': 's[64:67]', '2': 's[68:71]', 'out': 's[72:75]'}
sDBG = 's[92:95]'
lane16 = V(0)
EPS = 1e-5


def mf(d, a, b, c):
    return f'v_mfma_f32_16x16x32_bf16 {d}, {a}, {b}, {c}'


def allsum(r, t, full=True):
    s = [f'v_add_f32_dpp {r}, {r}, {r} row_ror:{k} row_mask:0xf bank_mask:0xf' for k in (8, 4, 2, 1)]
    s += [f'v_mov_b32 {t}, {r}', f'v_permlane16_swap_b32 {r}, {t}', f'v_add_f32 {r}, {r}, {t}']
    if full:
        s += [f'v_mov_b32 {t}, {r}', f'v_permlane32_swap_b32 {r}, {t}', f'v_add_f32 {r}, {r}, {t}']
    return s


def rnd_bf(d, s):
    return [f'v_cvt_pk_bf16_f32 {d}, {s}, {s}', f'v_and_b32 {d}, 0xffff0000, {d}']


def denom(var):
    return rnd_bf(var, var) + [f'v_add_f32 {var}, {fbits(EPS)}, {var}'] + rnd_bf(var, var) + [f'v_sqrt_f32 {var}, {var}'] + \
        rnd_bf(var, var) + [f'v_rcp_f32 {var}, {var}']


def setup(P):
    t0 = V(1)
    P(f'''
    v_lshrrev_b32 {t0}, 6, v0
    v_and_b32 v0, 63, v0
    v_readfirstlane_b32 {sWv}, {t0}
    v_lshlrev_b32 {lane16}, 4, v0
    s_mov_b32 {sC2}, {fbits(C2)}
    s_mov_b32 {sLo}, 0x05040100
    s_mov_b32 {sHi}, 0x07060302
    s_mov_b32 {sCNT}, 0
    s_cmp_eq_u32 {sTM}, 1
    s_cselect_b32 {sN}, 10, 9
    ''')


def ln_issue(P):
    for k in range(3):
        P(f'''
        s_add_u32 {sT}, {sWv}, {4 * k}
        s_mul_i32 {sT2}, {sT}, 7
        s_add_u32 {sT2}, {sT2}, {sTM}
        s_sub_u32 {sT2}, {sT2}, 1
        s_lshl_b32 {sT2}, {sT2}, 5
        s_add_u32 {sT2}, {sT2}, {sH}
        s_lshl_b32 {sT2}, {sT2}, 10
        s_cmp_lt_u32 {sT}, {sN}
        s_cselect_b32 s{26 + k}, {sT2}, 0x20000000
        buffer_load_dwordx4 {V(4 + 4 * k, 4)}, {lane16}, {sX}, s{26 + k} offen''')


def ln_finish(P):
    for k in range(3):
        raw, x, m, t, va = V(4 + 4 * k, 4), V(16, 8), V(24), V(25), V(26)
        S = []
        for j in range(4):
            S += [f'v_lshlrev_b32 {x[2 * j]}, 16, {raw[j]}', f'v_and_b32 {x[2 * j + 1]}, 0xffff0000, {raw[j]}']
        S += [f'v_add_f32 {m}, {x[0]}, {x[1]}'] + [f'v_add_f32 {m}, {m}, {x[j]}' for j in range(2, 8)]
        S += allsum(m, t) + [f'v_mul_f32 {m}, {fbits(1 / 512)}, {m}']
        S += [f'v_sub_f32 {t}, {x[0]}, {m}', f'v_mul_f32 {va}, {t}, {t}']
        for j in range(1, 8):
            S += [f'v_sub_f32 {t}, {x[j]}, {m}', f'v_fmac_f32 {va}, {t}, {t}']
        S += allsum(va, t) + [f'v_mul_f32 {va}, {fbits(1 / 512)}, {va}'] + denom(va) + rnd_bf(m, m)
        for j in range(8):
            S += [f'v_sub_f32 {x[j]}, {x[j]}, {m}'] + rnd_bf(x[j], x[j]) + [f'v_mul_f32 {x[j]}, {x[j]}, {va}']
        for j in range(4):
            S += [f'v_cvt_pk_bf16_f32 {raw[j]}, {x[2 * j]}, {x[2 * j + 1]}']
        S += [f's_add_u32 {sT}, s{26 + k}, {WS_XN}', f'buffer_store_dwordx4 {raw}, {lane16}, {sWS}, {sT} offen sc1']
        emit(P, S)
    z = V(16)
    P(f'''
    v_mov_b32 {z}, 0
    s_lshl_b32 {sT}, {sH}, 7
    s_lshl_b32 {sT2}, {sWv}, 5
    s_add_u32 {sT}, {sT}, {sT2}
    s_lshl_b32 {sT2}, {sTM}, 2
    s_add_u32 {sT}, {sT}, {sT2}
    s_add_u32 s29, {sT}, {WS_KF}
    buffer_store_dword {z}, off, {sWS}, s29 sc1
    s_mul_i32 {sT}, {sTM}, 1536
    s_add_u32 {sT}, {sT}, {WS_F1}
    s_lshl_b32 {sT2}, {sWv}, 7
    s_add_u32 s30, {sT}, {sT2}
    s_lshl_b32 {sT2}, {sH}, 2
    s_add_u32 s31, s30, {sT2}
    s_lshl_b32 {sT2}, {sH}, 4
    s_add_u32 s32, {sT}, {sT2}
    s_lshl_b32 {sT2}, {sWv}, 2
    s_add_u32 s32, s32, {sT2}
    buffer_store_dword {z}, off, {sWS}, s31 sc1
    buffer_store_dword {z}, off, {sWS}, s32 offset:512 sc1
    buffer_store_dword {z}, off, {sWS}, s31 offset:1024 sc1
    ''')
sKF, sFR, sFW, sFW1 = 's29', 's30', 's31', 's32'


def arrive(P, team, tmp):
    P(f'''
    s_lshl_b32 {sT}, {team}, 5
    v_mov_b32 {tmp}, 1
    s_mov_b64 exec, 1
    buffer_atomic_add {tmp}, off, {sDBG}, {sT} offset:4
    s_mov_b64 exec, -1''')


def wait_team(P, tag, team, tmp):
    P(f's_lshl_b32 {sT2}, {team}, 5')
    P.label(f'L_wt_{tag}')
    P(f'''
    buffer_load_dword {tmp}, off, {sDBG}, {sT2} offset:4 sc1
    s_add_u32 {sCNT}, {sCNT}, 1
    s_cmp_gt_u32 {sCNT}, 0x100000
    s_cbranch_scc1 L_bail
    s_waitcnt vmcnt(0)
    v_readfirstlane_b32 {sT}, {tmp}
    s_cmp_lt_u32 {sT}, 128
    s_cbranch_scc1 L_wt_{tag}''')


def put(P, dst, hi, lo, sel, pt, k):
    if dst.k == 'a':
        r = pt[k[0] % len(pt)]; k[0] += 1
        P(f'v_perm_b32 {r}, {hi}, {lo}, {sel}')
        P(f'v_accvgpr_write_b32 {dst}, {r}')
    else:
        P(f'v_perm_b32 {dst}, {hi}, {lo}, {sel}')


def load_qkv(P, mats, hooks={}):
    va, t0, t1 = V(28), V(29), V(30)
    TMP = [V(32 + 8 * i, 8) for i in range(7)]
    pt = [V(88 + i) for i in range(4)]
    P(f'''
    v_lshrrev_b32 {t0}, 8, {lane16}
    v_lshlrev_b32 {t0}, 16, {t0}
    v_and_b32 {t1}, 0xf0, {lane16}
    v_lshrrev_b32 {t1}, 2, {t1}
    v_add_u32 {t0}, {t0}, {t1}
    s_lshl_b32 {sT}, {sH}, 8
    s_lshl_b32 {sT2}, {sWv}, 6
    s_add_u32 {sT}, {sT}, {sT2}
    v_add_u32 {va}, {sT}, {t0}''')
    groups = [(m, kp) for m in mats for kp in range(16)]
    k = [0]
    def issue(i):
        m, kp = groups[i]
        for p in range(8):
            P(f's_mov_b32 {sT}, {(32 * kp + p) * 8192}')
            P(f'buffer_load_dword {TMP[i % 7][p]}, {va}, {SRD[m]}, {sT} offen')
    def finish(i):
        m, kp = groups[i]
        for j in range(4):
            for tau in range(2):
                put(P, WQ(m, kp, tau)[j], TMP[i % 7][2 * j + 1], TMP[i % 7][2 * j], sHi if tau else sLo, pt, k)
    for i in range(6):
        issue(i)
    if 'first' in hooks: hooks['first'](P)
    for i in range(len(groups)):
        if i + 6 < len(groups):
            issue(i + 6)
        finish(i)
        if i in hooks: hooks[i](P)


def WQ(m, kp, tau):
    o = 8 * kp + 4 * tau
    return {'k': A(o, 4), 'v': A(128 + o, 4), 'q': V(128 + o, 4)}[m]


g_dma, a_f0, a_f1 = V(1), V(2), V(3)


def stage_setup(P):
    t0, t1, l = V(4), V(5), V(6)
    P(f'''
    v_lshrrev_b32 {l}, 4, {lane16}
    v_lshrrev_b32 {t0}, 3, {l}
    v_and_b32 {t1}, 7, {l}
    v_xor_b32 {t1}, {t1}, {t0}
    v_lshlrev_b32 {t1}, 4, {t1}
    v_lshlrev_b32 {t0}, 10, {t0}
    v_add_u32 {t0}, {t0}, {t1}
    s_lshl_b32 {sT}, {sWv}, 13
    v_add_u32 {g_dma}, {sT}, {t0}
    v_and_b32 {t0}, 7, {l}
    v_lshrrev_b32 {t1}, 4, {l}
    v_xor_b32 {t1}, {t1}, {t0}
    v_lshlrev_b32 {t1}, 4, {t1}
    v_lshlrev_b32 {t0}, 7, {t0}
    v_add_u32 {t0}, {t0}, {t1}
    v_and_b32 {t1}, 8, {l}
    v_lshlrev_b32 {t1}, 10, {t1}
    v_add_u32 {a_f0}, {t0}, {t1}
    v_xor_b32 {a_f1}, 64, {a_f0}''')


def stage(soff, lds_sreg):
    S = []
    for cb in range(8):
        S += [f's_add_u32 m0, {lds_sreg}, {cb * 896}', (f'buffer_load_dwordx4 {g_dma}, {sWS}, {soff} offen offset:{cb * 128} sc1 lds', 'dma')]
    return S


def frag(dst, buf, T, kp):
    return f'ds_read_b128 {dst}, {a_f1 if kp % 2 else a_f0} offset:{buf * 32768 + T * 16384 + (kp // 2) * 1024}'


def proj_pass(P, which):
    sXN, sOUT, sL = 's33', 's34', ['s35', 's36']
    XF = [[V(8 + 8 * r + 4 * T, 4) for T in range(2)] for r in range(3)]
    ACC = V(32, 32)
    Y = V(64, 16)
    base = WS_K if which == 'kv' else WS_Q
    P(f'''
    s_sub_u32 {sSEG}, {sTM}, 1
    s_lshl_b32 {sXN}, {sSEG}, 15
    s_add_u32 {sXN}, {sXN}, {WS_XN}
    s_lshl_b32 {sOUT}, {sSEG}, 18
    s_lshl_b32 {sT}, {sH}, 13
    s_add_u32 {sOUT}, {sOUT}, {sT}
    s_lshl_b32 {sT}, {sWv}, 11
    s_add_u32 {sOUT}, {sOUT}, {sT}
    s_add_u32 {sOUT}, {sOUT}, {base}
    s_lshl_b32 {sL[0]}, {sWv}, 13
    s_add_u32 {sL[1]}, {sL[0]}, 32768
    s_mov_b32 {sI}, 0
    s_barrier''')
    emit(P, stage(sXN, sL[0]))
    P.label(f'L_{which}_top', keep=True)
    for b in range(2):
        nst = 4 if which == 'kv' else 2
        if b == 0:
            P(f's_cmp_eq_u32 {sI}, 0\ns_cbranch_scc1 L_{which}_first')
        P(f's_waitcnt vmcnt({nst})')
        if b == 0:
            P(f's_branch L_{which}_go')
            P.label(f'L_{which}_first', keep=True)
            P('s_waitcnt vmcnt(0)')
            P.label(f'L_{which}_go', keep=True)
        P.assume(lgkm=False)
        P(f'''
        s_barrier
        s_add_u32 {sXN}, {sXN}, {7 * 32768}''')
        st = stage(sXN, sL[1 - b])
        S = [frag(XF[0][0], b, 0, 0), frag(XF[0][1], b, 1, 0), frag(XF[1][0], b, 0, 1), frag(XF[1][1], b, 1, 1)]
        for kp in range(16):
            x = XF[kp % 3]
            mm = []
            c = lambda r: r if kp else 0
            if which == 'kv':
                for T in range(2):
                    for tau in range(2):
                        d = ACC[8 * T + 4 * tau:8 * T + 4 * tau + 4]
                        mm.append(mf(d, WQ('k', kp, tau), x[T], c(d)))
                    for tau in range(2):
                        d = ACC[16 + 8 * T + 4 * tau:16 + 8 * T + 4 * tau + 4]
                        mm.append(mf(d, x[T], WQ('v', kp, tau), c(d)))
            else:
                for T in range(2):
                    for tau in range(2):
                        d = ACC[8 * T + 4 * tau:8 * T + 4 * tau + 4]
                        mm.append(mf(d, WQ('q', kp, tau), x[T], c(d)))
            fill = []
            if kp + 2 < 16:
                fill += [frag(XF[(kp + 2) % 3][0], b, 0, kp + 2), frag(XF[(kp + 2) % 3][1], b, 1, kp + 2)]
            if kp < 8:
                fill += [st[2 * kp], st[2 * kp + 1]]
            S += merge(mm, fill)
            if which == 'kv' and kp == 10:
                S += ['s_waitcnt vmcnt(8)', f'v_mov_b32 {Y[0]}, {sI}', f'buffer_store_dword {Y[0]}, off, {sWS}, {sKF} sc1']
        kq = lambda T, tau, i: ACC[8 * T + 4 * tau + i]
        sc = ' sc1' if which == 'kv' else ''
        for T in range(2):
            for i in range(4):
                if which == 'kv':
                    S += [f'v_mul_f32 {kq(T, 0, i)}, {sC2}, {kq(T, 0, i)}', f'v_mul_f32 {kq(T, 1, i)}, {sC2}, {kq(T, 1, i)}']
                S += [f'v_cvt_pk_bf16_f32 {Y[4 * T + i]}, {kq(T, 0, i)}, {kq(T, 1, i)}']
            S += [f'buffer_store_dwordx4 {Y[4 * T:4 * T + 4]}, {lane16}, {sWS}, {sOUT} offen offset:{1024 * T}{sc}']
        if which == 'kv':
            vq = lambda T, tau, i: ACC[16 + 8 * T + 4 * tau + i]
            S += [f's_add_u32 {sT}, {sOUT}, {WS_V - WS_K}']
            for tau in range(2):
                for d in range(4):
                    S += [f'v_cvt_pk_bf16_f32 {Y[8 + 4 * tau + d]}, {vq(d % 2, tau, 2 * (d // 2))}, {vq(d % 2, tau, 2 * (d // 2) + 1)}']
                S += [f'buffer_store_dwordx4 {Y[8 + 4 * tau:12 + 4 * tau]}, {lane16}, {sWS}, {sT} offen offset:{1024 * tau} sc1']
        S += [f's_add_u32 {sOUT}, {sOUT}, {7 * SEG_SZ}', f's_add_u32 {sI}, {sI}, 1', f's_cmp_ge_u32 {sI}, {sN}']
        emit(P, S)
        if b == 0:
            P(f's_cbranch_scc1 L_{which}_done')
        else:
            P(f's_cbranch_scc0 L_{which}_top')
    P.label(f'L_{which}_done', keep=True)
    P('s_waitcnt vmcnt(0)')
    if which == 'kv':
        P(f'v_mov_b32 {Y[0]}, {sI}\nbuffer_store_dword {Y[0]}, off, {sWS}, {sKF} sc1')


def phase1(P):
    setup(P)
    ln_issue(P)
    load_qkv(P, 'kv', hooks={'first': ln_finish, 7: lambda P: arrive(P, sTM, V(27))})
    stage_setup(P)
    wait_team(P, 'xn', sTM, V(7))
    proj_pass(P, 'kv')
    load_qkv(P, 'q')
    proj_pass(P, 'q')


WO = lambda kp, tau: A(32 * kp + 4 * tau, 4)
W1 = lambda kp: A(128 + 4 * kp, 4)
W3 = lambda kp: A(192 + 4 * kp, 4)
W2 = lambda kp, tau: V(192 + 32 * kp + 4 * tau, 4)
L_HN, L_O, L_ACT, L_ST = 0, 32768, 40960, 45056


def load_p2(P):
    va, t0, t1, vs = V(28), V(29), V(30), V(31)
    pt = [V(176 + i) for i in range(4)]
    k = [0]
    TMP = [V(32 + 32 * i, 32) for i in range(4)]
    v2 = V(27)
    P(f'''
    v_lshrrev_b32 {t0}, 8, {lane16}
    v_and_b32 {t1}, 0xf0, {lane16}
    v_lshlrev_b32 {va}, 13, {t0}
    v_add_u32 {va}, {va}, {t1}
    v_lshlrev_b32 {v2}, 12, {t0}
    v_add_u32 {v2}, {v2}, {t1}
    s_lshl_b32 {sT2}, {sWv}, 8
    s_lshl_b32 {sT}, {sH}, 17
    s_add_u32 {sT}, {sT}, {sT2}
    v_add_u32 {va}, {sT}, {va}
    s_lshl_b32 {sT}, {sH}, 16
    s_add_u32 {sT}, {sT}, {sT2}
    v_add_u32 {v2}, {sT}, {v2}''')
    groups = [('o', kp) for kp in range(4)] + [('2', kp) for kp in range(2)]
    def issue(i):
        m, kp = groups[i]
        for p in range(8):
            row = 32 * kp + p if m == 'o' else 32 * kp + 16 * (p // 4) + p % 4
            P(f's_mov_b32 {sT}, {row * 1024}')
            P(f'buffer_load_dwordx4 {TMP[i % 4][4 * p:4 * p + 4]}, {va if m == "o" else v2}, {SRD[m]}, {sT} offen')
    def finish(i):
        m, kp = groups[i]
        for j in range(4):
            for tau in range(8):
                dst = (WO if m == 'o' else W2)(kp, tau)[j]
                put(P, dst, TMP[i % 4][4 * (2 * j + 1) + tau // 2], TMP[i % 4][4 * (2 * j) + tau // 2], sHi if tau % 2 else sLo, pt, k)
    for i in range(4):
        issue(i)
    vf = V(26)
    P(f'''
    v_mul_u32_u24 {vf}, {8 * 3584}, {t0}
    v_lshrrev_b32 {t1}, 5, {t1}
    v_lshlrev_b32 {t1}, 2, {t1}
    v_add_u32 {vf}, {vf}, {t1}
    s_lshl_b32 {sT}, {sH}, 7
    s_lshl_b32 {sT2}, {sWv}, 5
    s_add_u32 {sT}, {sT}, {sT2}
    v_add_u32 {vf}, {sT}, {vf}
    v_mov_b32 {t1}, 0x40000000
    s_cmp_lt_u32 {sH}, 28
    s_cselect_b64 vcc, -1, 0
    v_cndmask_b32 {vf}, {t1}, {vf}, vcc
    v_and_b32 {t1}, 16, {lane16}
    v_cmp_eq_u32 vcc, 0, {t1}
    v_mov_b32 {t0}, {sHi}
    v_mov_b32 {t1}, {sLo}
    v_cndmask_b32 {vs}, {t0}, {t1}, vcc''')
    T2 = [V(32 + 8 * i, 8) for i in range(7)]
    g2 = [(m, kp) for m in '13' for kp in range(16)]
    def issue2(i):
        m, kp = g2[i]
        for p in range(8):
            P(f's_mov_b32 {sT}, {(32 * kp + p) * 3584}')
            P(f'buffer_load_dword {T2[i % 7][p]}, {vf}, {SRD[m]}, {sT} offen')
    def finish2(i):
        m, kp = g2[i]
        for j in range(4):
            put(P, (W1 if m == '1' else W3)(kp)[j], T2[i % 7][2 * j + 1], T2[i % 7][2 * j], vs, pt, k)
    finish(0); issue(4); finish(1); issue(5); finish(2); finish(3); finish(4)
    for i in range(4):
        issue2(i)
    finish(5)
    for i in range(4, 6):
        issue2(i)
    for i in range(len(g2)):
        if i + 6 < len(g2):
            issue2(i + 6)
        finish2(i)


g_pa, g_rd, g_row, a_ow, a_aw, a_or = V(4), V(5), V(6), V(7), V(8), V(9)
sel = V(12, 4)
ones = V(16, 4)
zz = V(11)
QF, KF, VF = V(20, 16), V(36, 32), V(68, 16)
KM, VM = V(84, 16), V(100, 8)
H = V(108, 4)
XR = V(112, 2)
WK = V(114, 78)
sQ, sKo, sVo, sEKo, sEVo, sXFo = 's33', 's34', 's35', 's36', 's37', 's38'
sPA, sPB, sHN, sROW, sLH = 's39', 's42', 's43', 's76', 's77'
sMK = ['s[%d:%d]' % (78 + 2 * i, 79 + 2 * i) for i in range(7)] + ['s[20:21]']
sNINF = 's23'


def p2_setup(P):
    t0, t1, l, c, g = WK[0], WK[1], WK[2], WK[3], WK[4]
    P(f'''
    v_lshrrev_b32 {l}, 4, {lane16}
    v_and_b32 {c}, 15, {l}
    v_lshrrev_b32 {g}, 4, {l}
    s_lshl_b32 {sT2}, {sWv}, 8
    v_lshlrev_b32 {t0}, 17, {g}
    v_lshlrev_b32 {t1}, 4, {c}
    v_add_u32 {t0}, {t0}, {t1}
    s_lshl_b32 {sT}, {sH}, 10
    s_add_u32 {sT}, {sT}, {sT2}
    v_add_u32 {g_pa}, {sT}, {t0}
    v_lshlrev_b32 {t0}, 10, {g}
    v_add_u32 {t0}, {t0}, {t1}
    s_lshl_b32 {sT}, {sH}, 15
    s_add_u32 {sT}, {sT}, {sT2}
    v_add_u32 {g_rd}, {sT}, {t0}
    v_and_b32 {t0}, 1, {g}
    v_lshlrev_b32 {t0}, 3, {t0}
    v_add_u32 {t0}, {t0}, {t1}
    s_lshl_b32 {sT}, {sH}, 10
    s_add_u32 {sT}, {sT}, {sT2}
    v_add_u32 {t0}, {sT}, {t0}
    v_mov_b32 {t1}, 0x40000000
    v_cmp_gt_u32 vcc, 32, {l}
    v_cndmask_b32 {g_row}, {t1}, {t0}, vcc
    v_mov_b32 {a_or}, {t0}
    s_and_b32 {sT}, {sWv}, 1
    s_lshl_b32 {sT}, {sT}, 12
    s_and_b32 {sT2}, {sWv}, 2
    s_lshl_b32 {sT2}, {sT2}, 10
    s_add_u32 {sT}, {sT}, {sT2}
    s_add_u32 {sT2}, {sT}, {L_O}
    v_add_u32 {a_ow}, {sT2}, {lane16}
    s_and_b32 {sT}, {sWv}, 2
    s_lshl_b32 {sT}, {sT}, 9
    s_and_b32 {sT2}, {sWv}, 1
    s_lshl_b32 {sT2}, {sT2}, 3
    s_add_u32 {sT}, {sT}, {sT2}
    s_add_u32 {sT}, {sT}, {L_ACT}
    v_add_u32 {a_aw}, {sT}, {lane16}
    v_mov_b32 {zz}, 0
    v_mov_b32 {ones[0]}, 0x3f803f80
    v_mov_b32 {ones[1]}, 0x3f803f80
    v_mov_b32 {ones[2]}, 0x3f803f80
    v_mov_b32 {ones[3]}, 0x3f803f80
    v_and_b32 {t0}, 1, {c}
    v_lshlrev_b32 {t0}, 4, {t0}
    v_mov_b32 {t1}, 0x3f80
    v_lshlrev_b32 {t0}, {t0}, {t1}
    v_bfe_u32 {t1}, {c}, 1, 2
    ''')
    for j in range(4):
        P(f'v_cmp_eq_u32 vcc, {j}, {t1}\nv_cndmask_b32 {sel[j]}, 0, {t0}, vcc')
    P(f'''
    s_and_b32 {sT}, {sWv}, 1
    s_lshl_b32 {sT}, {sT}, 4
    v_add_u32 {t0}, {sT}, {c}
    v_lshlrev_b32 {t1}, 2, {g}
    v_sub_u32 {t0}, {t0}, {t1}''')
    for T in range(2):
        for i in range(4):
            P(f'v_cmp_le_i32 {sMK[4 * T + i]}, {16 * T + i}, {t0}')
    P(f'''
    s_mov_b32 {sNINF}, 0xff800000
    s_sub_u32 {sSEG}, {sTM}, 1
    s_lshl_b32 {sT}, {sSEG}, 18
    s_lshl_b32 {sT2}, {sH}, 13
    s_add_u32 {sT}, {sT}, {sT2}
    s_add_u32 {sKo}, {sT}, {WS_K}
    s_and_b32 {sT2}, {sWv}, 1
    s_lshl_b32 {sT2}, {sT2}, 10
    s_add_u32 {sQ}, {sT}, {sT2}
    s_add_u32 {sQ}, {sQ}, {WS_Q}
    s_and_b32 {sT2}, {sWv}, 2
    s_lshl_b32 {sT2}, {sT2}, 11
    s_add_u32 {sVo}, {sT}, {sT2}
    s_add_u32 {sVo}, {sVo}, {WS_V}
    s_lshr_b32 {sT}, {sT}, 1
    s_add_u32 {sEKo}, {sT}, {WS_EK}
    s_lshr_b32 {sT2}, {sT2}, 1
    s_add_u32 {sEVo}, {sT}, {sT2}
    s_add_u32 {sEVo}, {sEVo}, {WS_EV}
    s_lshl_b32 {sXFo}, {sH}, 7
    s_add_u32 {sXFo}, {sXFo}, {WS_XF}
    s_lshl_b32 {sT}, {sTM}, 20
    s_add_u32 {sPA}, {sT}, {WS_PA}
    s_add_u32 {sPB}, {sT}, {WS_PB}
    s_lshl_b32 {sT}, {sTM}, 15
    s_add_u32 {sHN}, {sT}, {WS_HN}
    s_lshl_b32 {sROW}, {sSEG}, 15
    s_lshl_b32 {sLH}, {sWv}, 13
    s_mov_b32 {sI}, 1
    ''')


def qkv_loads():
    S = []
    for kp in range(4):
        S += [f's_add_u32 {sT}, {sQ}, {2048 * kp}', f'buffer_load_dwordx4 {QF[4 * kp:4 * kp + 4]}, {lane16}, {sWS}, {sT} offen sc1']
        S += [f's_add_u32 {sT}, {sKo}, {2048 * kp}']
        for T in range(2):
            S += [f'buffer_load_dwordx4 {KF[8 * kp + 4 * T:8 * kp + 4 * T + 4]}, {lane16}, {sWS}, {sT} offen offset:{1024 * T} sc1']
    for j in range(4):
        S += [f'buffer_load_dwordx4 {VF[4 * j:4 * j + 4]}, {lane16}, {sWS}, {sVo} offen offset:{1024 * j} sc1']
    S += [f's_add_u32 {sQ}, {sQ}, {7 * SEG_SZ}', f's_add_u32 {sKo}, {sKo}, {7 * SEG_SZ}', f's_add_u32 {sVo}, {sVo}, {7 * SEG_SZ}']
    return S


def poll_flags(P, tag, soff, off, nl, want):
    t, a = WK[0], WK[1]
    P(f'''
    v_lshrrev_b32 {a}, 2, {lane16}
    v_min_u32 {a}, {4 * (nl - 1)}, {a}''')
    P.label(f'L_pf_{tag}', keep=True)
    P(f'''
    buffer_load_dword {t}, {a}, {sWS}, {soff} offen offset:{off} sc1
    s_add_u32 {sCNT}, {sCNT}, 1
    s_cmp_gt_u32 {sCNT}, 0x200000
    s_cbranch_scc1 L_bail
    s_waitcnt vmcnt(0)
    v_cmp_gt_u32 vcc, {want}, {t}
    s_cbranch_vccnz L_pf_{tag}''')


def set_flag(soff, off, sc):
    return ['s_waitcnt vmcnt(0)', f'v_mov_b32 {WK[0]}, {sI}', f'buffer_store_dword {WK[0]}, off, {sWS}, {soff} offset:{off}{sc}']


def proj_out(acc, afr, wfn, nk, soff, sc):
    Y = [WK[64:68], WK[68:72]]
    mm = [[mf(acc(T, tau), afr(T, kp), wfn(kp, tau), acc(T, tau) if kp else 0) for kp in range(nk) for tau in range(8)] for T in range(2)]
    def post(T):
        S = []
        for i in range(4):
            y = Y[i % 2]
            S += [f'v_cvt_pk_bf16_f32 {y[j]}, {acc(T, 2 * j)[i]}, {acc(T, 2 * j + 1)[i]}' for j in range(4)]
            S += [f's_add_u32 {sT}, {soff}, {(16 * T + i) * 32768}', f'buffer_store_dwordx4 {y}, {g_pa}, {sWS}, {sT} offen{sc}']
        return S
    return mm[0] + merge(mm[1], post(0), start=4, per=2) + post(1)


def reduce_rows(n, soff):
    D = WK[0:4]
    S = []
    for j in range(n):
        S += [f's_add_u32 {sT}, {soff}, {4096 * j}', f'buffer_load_dwordx4 {WK[8 + 4 * j:12 + 4 * j]}, {g_rd}, {sWS}, {sT} offen sc1']
    S += [mf(D, sel, WK[8 + 4 * j:12 + 4 * j], D if j else 0) for j in range(n)]
    return S


def p2_loop(P, mode):
    sc = ' sc1' if mode == 'slow' else ''
    P.label(f'L_p2_{mode}')
    emit(P, qkv_loads())
    P.label(f'L_p2top_{mode}', keep=True)
    X = [WK[4:8], WK[8:12]]
    M = WK[12:16]
    S = [f'buffer_load_dwordx2 {XR}, {a_or}, {sX}, {sROW} offen']
    S += [mf(X[T], KF[8 * kp + 4 * T:8 * kp + 4 * T + 4], QF[4 * kp:4 * kp + 4], X[T] if kp else 0) for kp in range(4) for T in range(2)]
    S += [f'v_mov_b32 {WK[16]}, {sNINF}']
    S += [f'v_cndmask_b32 {X[T][i]}, {WK[16]}, {X[T][i]}, {sMK[4 * T + i]}' for T in range(2) for i in range(4)]
    mx, t = WK[16], WK[17]
    S += [f'v_max3_f32 {mx}, {X[0][0]}, {X[0][1]}, {X[0][2]}', f'v_max3_f32 {mx}, {mx}, {X[0][3]}, {X[1][0]}',
          f'v_max3_f32 {mx}, {mx}, {X[1][1]}, {X[1][2]}', f'v_max_f32 {mx}, {mx}, {X[1][3]}', f's_add_u32 {sT2}, {sSEG}, 1']
    emit(P, S)
    poll_flags(P, f'x{mode}', sXFo, 0, 4, sT2)
    S = [f'buffer_load_dwordx4 {KM[4 * kp:4 * kp + 4]}, {lane16}, {sWS}, {sEKo} offen offset:{1024 * kp} sc1' for kp in range(4)]
    S += [f'buffer_load_dwordx4 {VM[4 * j:4 * j + 4]}, {lane16}, {sWS}, {sEVo} offen offset:{1024 * j} sc1' for j in range(2)]
    S += [f's_add_u32 {sEKo}, {sEKo}, {7 * ESEG_SZ}', f's_add_u32 {sEVo}, {sEVo}, {7 * ESEG_SZ}']
    S += [mf(M, KM[4 * kp:4 * kp + 4], QF[4 * kp:4 * kp + 4], M if kp else 0) for kp in range(4)]
    S += [f'v_mul_f32 {M[0]}, {sC2}, {M[0]}', f'v_mul_f32 {M[1]}, {sC2}, {M[1]}', f'v_max3_f32 {mx}, {mx}, {M[0]}, {M[1]}',
          f'v_mov_b32 {t}, {mx}', f'v_permlane16_swap_b32 {mx}, {t}', f'v_max_f32 {mx}, {mx}, {t}',
          f'v_mov_b32 {t}, {mx}', f'v_permlane32_swap_b32 {mx}, {t}', f'v_max_f32 {mx}, {mx}, {t}']
    vals = [X[T][i] for T in range(2) for i in range(4)] + [M[0], M[1]]
    S += [f'v_sub_f32 {v}, {v}, {mx}' for v in vals] + [f'v_exp_f32 {v}, {v}' for v in vals]
    PX, PM = WK[20:24], V(10, 2)
    S += [f'v_cvt_pk_bf16_f32 {PX[d]}, {X[d % 2][2 * (d // 2)]}, {X[d % 2][2 * (d // 2) + 1]}' for d in range(4)]
    S += [f'v_cvt_pk_bf16_f32 {PM[0]}, {M[0]}, {M[1]}']
    L, O = WK[24:28], [WK[28 + 4 * j:32 + 4 * j] for j in range(4)]
    m16 = lambda d, a: f'v_mfma_f32_16x16x16_bf16 {d}, {a}, {PM}, {d}'
    S += [mf(L, ones, PX, 0)] + [mf(O[j], VF[4 * j:4 * j + 4], PX, 0) for j in range(4)]
    S += [m16(L, ones[0:2])] + [m16(O[j], VM[2 * j:2 * j + 2]) for j in range(4)]
    S += [f'v_rcp_f32 {L[0]}, {L[0]}']
    S += [f'v_mul_f32 {O[j][i]}, {O[j][i]}, {L[0]}' for j in range(4) for i in range(4)]
    OW = [WK[4:8], WK[8:12]]
    for k2 in range(2):
        S += [f'v_cvt_pk_bf16_f32 {OW[k2][i]}, {O[2 * k2][i]}, {O[2 * k2 + 1][i]}' for i in range(4)]
        S += [f'ds_write_b128 {a_ow}, {OW[k2]} offset:{1024 * k2}']
    S += [W('lgkm'), 's_barrier']
    OF = lambda T, kp: KF[16 * T + 4 * kp:16 * T + 4 * kp + 4]
    S += [f'ds_read_b128 {OF(T, kp)}, {lane16} offset:{L_O + 4096 * T + 1024 * kp}' for T in range(2) for kp in range(4)]
    acc = lambda T, tau: WK[32 * T + 4 * tau:32 * T + 4 * tau + 4]
    S += proj_out(acc, OF, WO, 4, sPA, sc)
    S += set_flag(sFW, 0, sc)
    emit(P, S)
    poll_flags(P, f'a{mode}', sFR, 0, 32, sI)
    D = WK[0:4]
    m, t, va = WK[4], WK[5], WK[6]
    S = reduce_rows(8, sPA)
    S += [f'v_lshlrev_b32 {H[0]}, 16, {XR[0]}', f'v_and_b32 {H[1]}, 0xffff0000, {XR[0]}',
          f'v_lshlrev_b32 {H[2]}, 16, {XR[1]}', f'v_and_b32 {H[3]}, 0xffff0000, {XR[1]}']
    for i in range(4):
        S += rnd_bf(D[i], D[i]) + [f'v_add_f32 {H[i]}, {H[i]}, {D[i]}'] + rnd_bf(H[i], H[i])
    S += [f'v_add_f32 {m}, {H[0]}, {H[1]}', f'v_add_f32 {t}, {H[2]}, {H[3]}', f'v_add_f32 {m}, {m}, {t}']
    S += allsum(m, t, False) + [f'v_mul_f32 {m}, {fbits(1 / 128)}, {m}']
    S += [f'v_sub_f32 {t}, {H[0]}, {m}', f'v_mul_f32 {va}, {t}, {t}']
    for i in range(1, 4):
        S += [f'v_sub_f32 {t}, {H[i]}, {m}', f'v_fmac_f32 {va}, {t}, {t}']
    S += allsum(va, t, False)
    ST = WK[8:16]
    S += [f'v_mov_b32 {WK[5]}, {va}', f's_lshl_b32 {sT}, {sWv}, 3', f'v_mov_b32 {WK[7]}, {sT}',
          f'ds_write_b64 {WK[7]}, {WK[4:6]} offset:{L_ST}', W('lgkm'), 's_barrier',
          f'ds_read_b128 {ST[0:4]}, {zz} offset:{L_ST}', f'ds_read_b128 {ST[4:8]}, {zz} offset:{L_ST + 16}']
    S += [f'v_add_f32 {m}, {ST[0]}, {ST[2]}', f'v_add_f32 {t}, {ST[4]}, {ST[6]}', f'v_add_f32 {m}, {m}, {t}', f'v_mul_f32 {m}, {fbits(0.25)}, {m}',
          f'v_add_f32 {va}, {ST[1]}, {ST[3]}', f'v_add_f32 {t}, {ST[5]}, {ST[7]}', f'v_add_f32 {va}, {va}, {t}',
          f'v_mul_f32 {va}, {fbits(1 / 128)}, {va}']
    for j in range(4):
        S += [f'v_sub_f32 {t}, {ST[2 * j]}, {m}', f'v_fmac_f32 {va}, {t}, {t}']
    S += [f'v_mul_f32 {va}, {fbits(0.25)}, {va}'] + denom(va) + rnd_bf(m, m)
    for i in range(4):
        S += [f'v_sub_f32 {D[i]}, {H[i]}, {m}'] + rnd_bf(D[i], D[i]) + [f'v_mul_f32 {D[i]}, {D[i]}, {va}']
    S += [f'v_cvt_pk_bf16_f32 {D[0]}, {D[0]}, {D[1]}', f'v_cvt_pk_bf16_f32 {D[1]}, {D[2]}, {D[3]}',
          f'buffer_store_dwordx2 {D[0:2]}, {g_row}, {sWS}, {sHN} offen{sc}']
    S += set_flag(sFW1, 512, sc)
    S += [f's_cmp_ge_u32 {sH}, 28', f's_cbranch_scc1 L_skip_{mode}']
    emit(P, S)
    poll_flags(P, f'b{mode}', sFR, 512, 32, sI)
    S = stage(sHN, sLH) + ['s_waitcnt vmcnt(0)', 's_barrier']
    XF = [[WK[32 + 8 * r + 4 * T:36 + 8 * r + 4 * T] for T in range(2)] for r in range(3)]
    G, U = [WK[0:4], WK[4:8]], [WK[8:12], WK[12:16]]
    nxt = qkv_loads()
    S += [frag(XF[0][0], 0, 0, 0), frag(XF[0][1], 0, 1, 0), frag(XF[1][0], 0, 0, 1), frag(XF[1][1], 0, 1, 1)]
    for kp in range(16):
        x = XF[kp % 3]
        mm = [mf(G[0], W1(kp), x[0], G[0] if kp else 0), mf(U[0], W3(kp), x[0], U[0] if kp else 0),
              mf(G[1], W1(kp), x[1], G[1] if kp else 0), mf(U[1], W3(kp), x[1], U[1] if kp else 0)]
        fill = [frag(XF[(kp + 2) % 3][0], 0, 0, kp + 2), frag(XF[(kp + 2) % 3][1], 0, 1, kp + 2)] if kp + 2 < 16 else []
        fill += nxt[:2]
        del nxt[:2]
        S += merge(mm, fill)
    assert not nxt
    E = WK[16:24]
    gu = [(G[T][i], U[T][i], E[4 * T + i]) for T in range(2) for i in range(4)]
    S += [f'v_mul_f32 {e}, {fbits(-1.4426950408889634)}, {g}' for g, u, e in gu]
    S += [f'v_exp_f32 {e}, {e}' for g, u, e in gu]
    S += [f'v_add_f32 {e}, 1.0, {e}' for g, u, e in gu]
    S += [f'v_rcp_f32 {e}, {e}' for g, u, e in gu]
    S += [f'v_mul_f32 {g}, {g}, {e}' for g, u, e in gu]
    S += [f'v_mul_f32 {g}, {g}, {u}' for g, u, e in gu]
    for T in range(2):
        S += [f'v_cvt_pk_bf16_f32 {E[2 * T]}, {G[T][0]}, {G[T][1]}', f'v_cvt_pk_bf16_f32 {E[2 * T + 1]}, {G[T][2]}, {G[T][3]}',
              f'ds_write_b64 {a_aw}, {E[2 * T:2 * T + 2]} offset:{2048 * T}']
    S += [W('lgkm'), 's_barrier']
    AF = lambda T, kp: KM[8 * T + 4 * kp:8 * T + 4 * kp + 4]
    S += [f'ds_read_b128 {AF(T, kp)}, {lane16} offset:{L_ACT + 2048 * T + 1024 * kp}' for T in range(2) for kp in range(2)]
    S += proj_out(acc, AF, W2, 2, sPB, sc)
    S += set_flag(sFW, 1024, sc)
    emit(P, S)
    P.label(f'L_noffn_{mode}', keep=True)
    poll_flags(P, f'c{mode}', sFR, 1024, 28, sI)
    S = reduce_rows(7, sPB)
    for i in range(4):
        S += rnd_bf(D[i], D[i]) + [f'v_add_f32 {D[i]}, {D[i]}, {H[i]}']
    S += [f'v_cvt_pk_bf16_f32 {D[0]}, {D[0]}, {D[1]}', f'v_cvt_pk_bf16_f32 {D[1]}, {D[2]}, {D[3]}',
          f'buffer_store_dwordx2 {D[0:2]}, {g_row}, {SRD["out"]}, {sROW} offen',
          f's_add_u32 {sROW}, {sROW}, {7 * 32768}', f's_add_u32 {sSEG}, {sSEG}, 7', f's_add_u32 {sI}, {sI}, 1',
          f's_cmp_le_u32 {sI}, {sN}', f's_cbranch_scc1 L_p2top_{mode}', 's_endpgm']
    emit(P, S)
    P.label(f'L_skip_{mode}')
    emit(P, qkv_loads() + [f's_branch L_noffn_{mode}'])


def phase2_prep(P):
    load_p2(P)
    p2_setup(P)
    wait_team(P, 'chain', 0, WK[0])
    P('s_barrier')
```

```python
import sys
from asmgen import *
from layout import *
import chain as C
import worker as Wk

NAME = 'sequential_preLN__memory_aug_recurrent_mem_tr__glu_gated_swiglu__prompt_kernel'


def build(name=NAME, fake=None, hook=None, stamp=None, header=''):
    P = Prog()
    sH, sTM, sCNT = 's12', 's14', 's24'
    P(f'''
    s_cmp_ge_u32 s2, 256
    s_cbranch_scc1 L_bail
    s_load_dwordx2 s[4:5], s[0:1], {KA_WS}
    s_load_dwordx2 s[92:93], s[0:1], {KA_DBG}
    s_load_dwordx2 s[8:9], s[0:1], {KA_X}
    s_load_dwordx2 s[96:97], s[0:1], {KA_MEM0}
    s_load_dwordx2 s[44:45], s[0:1], {KA_WQ}
    s_load_dwordx2 s[48:49], s[0:1], {KA_WK}
    s_load_dwordx2 s[52:53], s[0:1], {KA_WV}
    s_load_dwordx2 s[56:57], s[0:1], {KA_WO}
    s_load_dwordx2 s[60:61], s[0:1], {KA_W1}
    s_load_dwordx2 s[64:65], s[0:1], {KA_W3}
    s_load_dwordx2 s[68:69], s[0:1], {KA_W2}
    s_load_dwordx2 s[72:73], s[0:1], {KA_OUT}
    s_getreg_b32 s3, hwreg(HW_REG_XCC_ID)
    s_and_b32 s3, s3, 15''')
    if fake:
        P(fake)
    P(f'''
    s_and_b32 s18, s3, 7
    s_lshl_b32 s18, s18, 5
    s_and_b32 s19, s3, 8
    s_lshl_b32 s19, s19, 1
    s_add_u32 s18, s18, s19
    v_mov_b32 v2, 1
    v_mov_b32 v3, 0
    s_mov_b32 {sCNT}, 0
    s_waitcnt lgkmcnt(0)
    s_mov_b32 s94, 256
    s_mov_b32 s95, 0x20000
    s_mov_b32 s6, {WS_SIZE}
    s_mov_b32 s7, 0x20000
    s_mov_b32 s10, 0x200000
    s_mov_b32 s11, 0x20000''')
    for r, sz in ((46, 0x400000), (50, 0x400000), (54, 0x400000), (58, 0x400000), (62, 512 * 3584), (66, 512 * 3584), (70, 1792 * 1024), (74, 0x200000)):
        P(f's_mov_b32 s{r}, {sz}\ns_mov_b32 s{r + 1}, 0x20000')
    if hook: hook(P, 'entry')
    P(f'''
    v_cmp_gt_u32 vcc, 64, v0
    s_cbranch_vccz L_r1
    s_mov_b64 exec, 1
    buffer_atomic_add v2, off, s[92:95], s18 sc0
    s_waitcnt vmcnt(0)
    v_readfirstlane_b32 {sH}, v2
    s_mov_b64 exec, -1
    s_mov_b32 {sTM}, s3
    s_cmp_lt_u32 s3, 8
    s_cbranch_scc0 L_over
    s_cmp_lt_u32 {sH}, 32
    s_cbranch_scc0 L_over''')
    P.label('L_role')
    P(f'''
    s_lshl_b32 s18, {sTM}, 5
    s_add_u32 s18, s18, {sH}
    v_mov_b32 v2, s18
    ds_write_b32 v3, v2
    s_waitcnt lgkmcnt(0)''')
    P.label('L_r1')
    P(f'''
    s_barrier
    ds_read_b32 v2, v3
    s_waitcnt lgkmcnt(0)
    v_readfirstlane_b32 s18, v2
    s_and_b32 {sH}, s18, 31
    s_lshr_b32 {sTM}, s18, 5
    s_barrier
    s_cmp_eq_u32 {sTM}, 0
    s_cbranch_scc1 L_chain''')
    Wk.phase1(P)
    if hook: hook(P, 'p1done')
    Wk.phase2_prep(P)
    P(f'''
    s_lshl_b32 s18, {sTM}, 5
    buffer_load_dword v114, off, s[92:95], s18 sc1
    s_waitcnt vmcnt(0)
    v_readfirstlane_b32 s18, v114''')
    if hook: hook(P, 'p2start')
    P(f'''
    s_cmp_lt_u32 s18, 32
    s_cbranch_scc1 L_p2_slow''')
    Wk.p2_loop(P, 'fast')
    Wk.p2_loop(P, 'slow')
    P.label('L_over')
    P(f'''
    v_mov_b32 v2, 1
    s_mov_b64 exec, 1
    buffer_atomic_add v2, off, s[92:95], 0 offset:8 sc0
    s_waitcnt vmcnt(0)
    v_readfirstlane_b32 s19, v2
    s_mov_b64 exec, -1
    v_lshlrev_b32 v4, 2, v0''')
    P.label('L_over_poll')
    P(f'''
    buffer_load_dword v2, v4, s[92:95], 0 offen sc1
    s_add_u32 {sCNT}, {sCNT}, 1
    s_cmp_gt_u32 {sCNT}, 0x100000
    s_cbranch_scc1 L_bail
    s_mov_b32 s18, 0
    s_waitcnt vmcnt(0)''')
    for x in range(16):
        P(f'v_readlane_b32 s20, v2, {4 * x}\ns_add_u32 s18, s18, s20')
    P('''
    s_cmp_lt_u32 s18, 256
    s_cbranch_scc1 L_over_poll''')
    for x in range(8):
        P(f'''
        v_readlane_b32 s20, v2, {8 * x}
        s_min_u32 s20, s20, 32
        s_mov_b32 {sTM}, {x}
        s_add_u32 {sH}, s20, s19
        s_cmp_lt_u32 {sH}, 32
        s_cbranch_scc1 L_role
        s_sub_u32 s19, {sH}, 32''')
    P('s_branch L_bail')
    P.label('L_chain')
    P('''
    s_mov_b32 s8, s96
    s_mov_b32 s9, s97
    s_mov_b32 s10, 8192''')
    C.setup(P)
    C.arm(P)
    P('s_waitcnt vmcnt(0)')
    Wk.arrive(P, 0, 'v52')
    C.load_weights(P)
    P.wait('lgkm')
    C.first_mem(P)
    P(f'v_lshrrev_b32 v53, 4, {C.lane16}\nv_and_b32 v53, 7, v53\nv_lshlrev_b32 v53, 5, v53')
    P.label('L_cw', keep=True)
    P(f'''
    buffer_load_dwordx2 v[54:55], v53, s[92:95], 0 offen sc1
    s_add_u32 {sCNT}, {sCNT}, 1
    s_cmp_gt_u32 {sCNT}, 0x100000
    s_cbranch_scc1 L_bail
    s_waitcnt vmcnt(0)
    v_cmp_gt_u32 vcc, 128, v55
    s_cbranch_vccnz L_cw
    buffer_load_dword v54, off, s[92:95], 0 sc1
    s_waitcnt vmcnt(0) lgkmcnt(0)
    v_readfirstlane_b32 s18, v54
    s_barrier
    s_cmp_lt_u32 s18, 32
    s_cbranch_scc1 L_chain_slow''')
    C.loops(P, modes=('fast', 'slow'), stamp=stamp, hook=hook)
    P.label('L_bail')
    P('s_endpgm')
    return header + f'''; @launch grid=(256,1,1) block=(256,1,1) lds=163840
.amdgcn_target "amdgcn-amd-amdhsa--gfx950"
.text
.globl {name}
.p2align 8
.type {name},@function
{name}:
''' + P.text() + f'''
.section .rodata,"a"
.p2align 6
.amdhsa_kernel {name}
  .amdhsa_next_free_vgpr 512
  .amdhsa_next_free_sgpr 102
  .amdhsa_accum_offset 256
  .amdhsa_group_segment_fixed_size 0
  .amdhsa_kernarg_size 112
  .amdhsa_user_sgpr_count 2
  .amdhsa_user_sgpr_kernarg_segment_ptr 1
  .amdhsa_system_sgpr_workgroup_id_x 1
  .amdhsa_float_denorm_mode_32 3
.end_amdhsa_kernel
'''


if __name__ == '__main__':
    base = 'cdna_kernels/' + NAME[:-7]
    hdr = ''.join(l for l in open(base + '.s.ref') if l.startswith(';') and '@launch' not in l and 'Override' not in l and 'grid=ceil' not in l)
    hdr += '; One persistent launch, one workgroup per CU. The workgroups of one die run the memory recurrence\n'
    hdr += '; (weights resident in registers / LDS), the others the token rows. Generated by gen/main.py.\n'
    t = build(header=hdr)
    open(sys.argv[1] if len(sys.argv) > 1 else base + '.s', 'w').write(t)
    print(len(t), 'bytes', len(t.splitlines()), 'lines')
```
